```python
import torch

def _softmax(x, axis=-1):
    return torch.softmax(x, dim=axis)
def _gelu(x):
    return torch.nn.functional.gelu(x, approximate="tanh")
def _silu(x):
    return torch.nn.functional.silu(x)
def _sigmoid(x):
    return torch.sigmoid(x)
def _layernorm(x, axis=-1, eps=1e-5):
    m = x.mean(dim=axis, keepdim=True)
    v = x.var(dim=axis, keepdim=True, unbiased=False)
    return (x - m) / torch.sqrt(v + eps)
def _scatter_add(tgt, idx, src, axis=0):
    return tgt.clone().index_add_(axis, idx, src)
def _segment_sum(src, seg, n):
    out = torch.zeros((n,) + src.shape[1:], dtype=src.dtype)
    return out.index_add_(0, seg, src)
def _pad(x, pw):
    flat = tuple(v for pair in reversed(pw) for v in pair)
    return torch.nn.functional.pad(x, flat)

kernel_name = 'concat_heads__gqa_block_cached__gqa_block_cached__near_ridge'

def setup_inputs():

    _w = (lambda a: (lambda t: t.to(torch.bfloat16) if t.is_floating_point() else t)(torch.as_tensor(a)))
    def _A_setup():
        B, Sq, D = 8, 192, 640
        Hq, Hkv, Sk, Dh = 32, 32, 512, 192
        assert Hq % Hkv == 0, (Hq, Hkv)
        return {
            "x": _w((lambda *s: torch.randn(*s, dtype=torch.bfloat16) * 0.8)(B, Sq, D)),
            "k_cache": _w((lambda *s: torch.randn(*s, dtype=torch.bfloat16) * 0.8)(B, Hkv, Sk, Dh)),
            "v_cache": _w((lambda *s: torch.randn(*s, dtype=torch.bfloat16) * 0.05)(B, Hkv, Sk, Dh)),
            "wq": _w((lambda *s: torch.randn(*s, dtype=torch.bfloat16) * 0.8)(D, Hq * Dh) * (D ** -0.5)),
            "wo": _w((lambda *s: torch.randn(*s, dtype=torch.bfloat16) * 0.05)(Hq * Dh, D) * ((Hq * Dh) ** -0.5)),
        }
    _A_in = _A_setup()

    def _B_setup():
        B, Sq, D = 8, 192, 640
        Hq, Hkv, Sk, Dh = 32, 32, 512, 192
        assert Hq % Hkv == 0, (Hq, Hkv)
        return {
            "x": _w((lambda *s: torch.randn(*s, dtype=torch.bfloat16) * 0.8)(B, Sq, D)),
            "k_cache": _w((lambda *s: torch.randn(*s, dtype=torch.bfloat16) * 0.8)(B, Hkv, Sk, Dh)),
            "v_cache": _w((lambda *s: torch.randn(*s, dtype=torch.bfloat16) * 0.05)(B, Hkv, Sk, Dh)),
            "wq": _w((lambda *s: torch.randn(*s, dtype=torch.bfloat16) * 0.8)(D, Hq * Dh) * (D ** -0.5)),
            "wo": _w((lambda *s: torch.randn(*s, dtype=torch.bfloat16) * 0.05)(Hq * Dh, D) * ((Hq * Dh) ** -0.5)),
        }
    _B_in = _B_setup()

    return {
        "A_x": _A_in["x"],
        "A_k_cache": _A_in["k_cache"],
        "A_v_cache": _A_in["v_cache"],
        "A_wq": _A_in["wq"],
        "A_wo": _A_in["wo"],
        "B_x": _B_in["x"],
        "B_k_cache": _B_in["k_cache"],
        "B_v_cache": _B_in["v_cache"],
        "B_wq": _B_in["wq"],
        "B_wo": _B_in["wo"],
    }

def reference(A_x, A_k_cache, A_v_cache, A_wq, A_wo, B_x, B_k_cache, B_v_cache, B_wq, B_wo):
    def _A_ref(x, k_cache, v_cache, wq, wo):
        B, Sq, D = x.shape
        Hq, Dh = 32, 192
        Hkv = k_cache.shape[1]
        rep = Hq // Hkv
        q = (lambda x, *d: x.permute(*d))((x @ wq).reshape(B, Sq, Hq, Dh), 0, 2, 1, 3)
        k = (lambda x, n, axis: torch.repeat_interleave(x, n, dim=axis))(k_cache, rep, axis=1)
        v = (lambda x, n, axis: torch.repeat_interleave(x, n, dim=axis))(v_cache, rep, axis=1)
        scores = torch.einsum("bhqd,bhkd->bhqk", q, k) * (Dh ** -0.5)
        p = _softmax(scores, axis=-1)
        o = torch.einsum("bhqk,bhkd->bhqd", p, v)
        return (lambda x, *d: x.permute(*d))(o, 0, 2, 1, 3).reshape(B, Sq, Hq * Dh) @ wo

    def _B_ref(x, k_cache, v_cache, wq, wo):
        B, Sq, D = x.shape
        Hq, Dh = 32, 192
        Hkv = k_cache.shape[1]
        rep = Hq // Hkv
        q = (lambda x, *d: x.permute(*d))((x @ wq).reshape(B, Sq, Hq, Dh), 0, 2, 1, 3)
        k = (lambda x, n, axis: torch.repeat_interleave(x, n, dim=axis))(k_cache, rep, axis=1)
        v = (lambda x, n, axis: torch.repeat_interleave(x, n, dim=axis))(v_cache, rep, axis=1)
        scores = torch.einsum("bhqd,bhkd->bhqk", q, k) * (Dh ** -0.5)
        p = _softmax(scores, axis=-1)
        o = torch.einsum("bhqk,bhkd->bhqd", p, v)
        return (lambda x, *d: x.permute(*d))(o, 0, 2, 1, 3).reshape(B, Sq, Hq * Dh) @ wo

    a = _A_ref(A_x, A_k_cache, A_v_cache, A_wq, A_wo)
    b = _B_ref(B_x, B_k_cache, B_v_cache, B_wq, B_wo)
    return torch.concatenate([a, b], axis=-1)
```

```python
import re

TRANS = ('v_exp_f32', 'v_log_f32', 'v_rcp_f32', 'v_rsq_f32', 'v_sqrt_f32', 'v_sin_f32', 'v_cos_f32')

_reg_re = re.compile(r'^(-|abs\(|-abs\()?([vas])(\d+)\)?$')
_rng_re = re.compile(r'^([vas])\[(\d+):(\d+)\]$')


def regs_of(tok):
    tok = tok.strip()
    m = _rng_re.match(tok)
    if m:
        return [(m.group(1), i) for i in range(int(m.group(2)), int(m.group(3)) + 1)]
    m = _reg_re.match(tok)
    if m:
        return [(m.group(2), int(m.group(3)))]
    if tok == 'vcc':
        return [('vcc', 0)]
    if tok == 'm0':
        return [('m0', 0)]
    if tok == 'exec':
        return [('exec', 0)]
    return []


class Inst:
    __slots__ = ('text', 'op', 'rd', 'wr', 'kind', 'tag', 'need', 'pre_nop', 'wait_vm', 'wait_lgkm', 'srcc', 'comment')

    def __init__(self, text, tag=None, need=None, comment=None):
        self.text = text
        self.tag = tag
        self.need = need
        self.pre_nop = 0
        self.wait_vm = None
        self.wait_lgkm = None
        self.srcc = []
        self.comment = comment
        self.parse()

    def parse(self):
        t = self.text.strip()
        if t.endswith(':'):
            self.op = 'label'; self.kind = 'label'; self.rd = []; self.wr = []
            return
        parts = t.split(None, 1)
        op = parts[0]
        self.op = op
        rest = parts[1] if len(parts) > 1 else ''
        ops = [x.strip() for x in rest.split(',')] if rest else []
        mods = []
        if ops:
            last = ops[-1].split()
            if last:
                ops[-1] = last[0]
                mods = last[1:]
        rd, wr = [], []
        k = 'other'
        if op.startswith('v_mfma'):
            k = 'mfma'
            wr = regs_of(ops[0]); rd = regs_of(ops[1]) + regs_of(ops[2]) + regs_of(ops[3])
            self.srcc = regs_of(ops[3])
        elif op.startswith('v_permlane') and 'swap' in op:
            k = 'permlane'
            wr = regs_of(ops[0]) + regs_of(ops[1]); rd = list(wr)
        elif op.startswith('v_cmp'):
            k = 'valu'
            wr = regs_of(ops[0]); rd = sum((regs_of(x) for x in ops[1:]), [])
        elif op.startswith('v_readfirstlane') or op.startswith('v_readlane'):
            k = 'readlane'
            wr = regs_of(ops[0]); rd = sum((regs_of(x) for x in ops[1:]), [])
        elif op.startswith('v_'):
            k = 'trans' if op.split('_e')[0] in TRANS or op in TRANS else 'valu'
            wr = regs_of(ops[0]); rd = sum((regs_of(x) for x in ops[1:]), [])
            if op.startswith('v_fmac') or op.startswith('v_pk_fmac'):
                rd += wr
            if op.startswith('v_add_co') or op.startswith('v_addc_co'):
                wr += regs_of(ops[1])
        elif op.startswith('ds_read'):
            k = 'ds_rd'
            wr = regs_of(ops[0]); rd = regs_of(ops[1])
        elif op.startswith('ds_write'):
            k = 'ds_wr'
            rd = sum((regs_of(x) for x in ops), [])
        elif op.startswith('buffer_load'):
            if 'lds' in mods:
                k = 'vm_dma'
                rd = sum((regs_of(x) for x in ops), []) + [('m0', 0)]
            else:
                k = 'vm_ld'
                wr = regs_of(ops[0]); rd = sum((regs_of(x) for x in ops[1:]), [])
        elif op.startswith('buffer_store'):
            k = 'vm_st'
            rd = sum((regs_of(x) for x in ops), [])
            self.srcc = regs_of(ops[0])
        elif op.startswith('s_load'):
            k = 'smem'
            wr = regs_of(ops[0]); rd = regs_of(ops[1])
        elif op == 's_nop':
            k = 'nop'
        elif op == 's_waitcnt':
            k = 'wait'
        elif op == 's_barrier':
            k = 'barrier'
        elif op.startswith('s_cbranch') or op == 's_branch' or op == 's_endpgm':
            k = 'branch'
        elif op.startswith('s_cmp'):
            k = 'salu'
            rd = sum((regs_of(x) for x in ops), [])
        elif op in ('s_setprio', 's_sleep'):
            k = 'salu'
        elif op == 's_swappc_b64':
            k = 'salu'
            wr = regs_of(ops[0]); rd = regs_of(ops[1])
        elif op == 's_setpc_b64':
            k = 'branch'
            rd = regs_of(ops[0])
        elif op.startswith('s_'):
            k = 'salu'
            wr = regs_of(ops[0]); rd = sum((regs_of(x) for x in ops[1:]), [])
        else:
            raise ValueError('unknown instruction: ' + t)
        self.kind = k
        self.rd = rd
        self.wr = wr

    def nstates(self):
        if self.kind == 'label':
            return 0
        if self.kind == 'nop':
            return int(self.text.split()[1]) + 1
        return 1


class Prog:
    def __init__(self):
        self.ins = []
        self.segs = []
        self._loop_start = None

    def emit(self, text, tag=None, need=None, comment=None):
        i = Inst(text, tag, need, comment)
        self.ins.append(i)
        return i

    def __call__(self, text, **kw):
        return self.emit(text, **kw)

    def loop_begin(self):
        self._loop_start = len(self.ins)

    def loop_end(self, reps=2):
        self.segs.append((self._loop_start, len(self.ins), reps))
        self._loop_start = None

    def trace(self):
        tr = []
        pos = 0
        for (a, b, r) in self.segs:
            tr += list(range(pos, a))
            for _ in range(r):
                tr += list(range(a, b))
            pos = b
        tr += list(range(pos, len(self.ins)))
        return tr

    def pass_waitcnt(self):
        tr = self.trace()
        vm = []
        lg = []
        smem_pending = False
        smem_dst = set()
        for idx in tr:
            I = self.ins[idx]
            if I.kind == 'label':
                continue
            touched = set(I.rd) | set(I.wr)
            need_n = None
            for p, o in enumerate(vm):
                hit = bool(o['dst'] & touched) or (I.need and o['tag'] in I.need)
                if hit:
                    n = len(vm) - 1 - p
                    need_n = n if need_n is None else min(need_n, n)
            if I.kind == 'wait' and 'vmcnt(0)' in I.text:
                vm = []
            if I.kind in ('vm_ld', 'vm_st', 'vm_dma') and len(vm) >= 60:
                need_n = 56 if need_n is None else min(need_n, 56)
            if need_n is not None:
                need_n = min(need_n, 63)
                I.wait_vm = need_n if I.wait_vm is None else min(I.wait_vm, need_n)
                vm = vm[len(vm) - need_n:] if need_n > 0 else []
            need_l = None
            for p, o in enumerate(lg):
                if o['dst'] & touched:
                    n = len(lg) - 1 - p
                    need_l = n if need_l is None else min(need_l, n)
            if smem_pending and (smem_dst & touched):
                need_l = 0
            if I.kind == 'barrier':
                if any(o['wr'] for o in lg):
                    need_l = 0
            if I.kind == 'wait' and 'lgkmcnt(0)' in I.text:
                lg = []; smem_pending = False; smem_dst = set()
            if need_l is not None:
                if smem_pending:
                    need_l = 0
                need_l = min(need_l, 15)
                I.wait_lgkm = need_l if I.wait_lgkm is None else min(I.wait_lgkm, need_l)
                lg = lg[len(lg) - need_l:] if need_l > 0 else []
                if need_l == 0:
                    smem_pending = False; smem_dst = set()
            if I.kind in ('vm_ld', 'vm_st', 'vm_dma'):
                vm.append(dict(dst=set(I.wr), tag=I.tag))
            elif I.kind == 'ds_rd':
                lg.append(dict(dst=set(I.wr), wr=False))
            elif I.kind == 'ds_wr':
                lg.append(dict(dst=set(), wr=True))
            elif I.kind == 'smem':
                smem_pending = True; smem_dst |= set(I.wr)

    def materialize_waits(self):
        out = []
        idxmap = {}
        for i, I in enumerate(self.ins):
            idxmap[i] = len(out)
            if I.wait_vm is not None or I.wait_lgkm is not None:
                s = 's_waitcnt'
                if I.wait_vm is not None:
                    s += ' vmcnt(%d)' % I.wait_vm
                if I.wait_lgkm is not None:
                    s += ' lgkmcnt(%d)' % I.wait_lgkm
                out.append(Inst(s))
                I.wait_vm = I.wait_lgkm = None
            out.append(I)
        idxmap[len(self.ins)] = len(out)
        self.segs = [(idxmap[a], idxmap[b], r) for (a, b, r) in self.segs]
        self.ins = out

    def verify_waits(self):
        tr = self.trace()
        vm = []; lg = []
        for idx in tr:
            I = self.ins[idx]
            if I.kind == 'label':
                continue
            if I.kind == 'wait':
                m = re.search(r'vmcnt\((\d+)\)', I.text)
                if m:
                    n = int(m.group(1)); vm = vm[len(vm) - n:] if n > 0 and n < len(vm) else (vm if n >= len(vm) else [])
                m = re.search(r'lgkmcnt\((\d+)\)', I.text)
                if m:
                    n = int(m.group(1)); lg = lg[len(lg) - n:] if n > 0 and n < len(lg) else (lg if n >= len(lg) else [])
                continue
            touched = set(I.rd) | set(I.wr)
            for o in vm:
                if (o['dst'] & touched) or (I.need and o['tag'] in I.need):
                    raise RuntimeError('uncovered vmem dependency at: ' + I.text)
            for o in lg:
                if o['dst'] & touched:
                    raise RuntimeError('uncovered lds dependency at: ' + I.text)
            if I.kind == 'barrier' and any(o['wr'] for o in lg):
                raise RuntimeError('lds write outstanding at barrier')
            if I.kind in ('vm_ld', 'vm_st', 'vm_dma'):
                vm.append(dict(dst=set(I.wr), tag=I.tag))
            elif I.kind == 'ds_rd':
                lg.append(dict(dst=set(I.wr), wr=False))
            elif I.kind == 'ds_wr':
                lg.append(dict(dst=set(), wr=True))
            if len(vm) > 63:
                raise RuntimeError('too many outstanding vmem ops')
            if len(lg) > 15:
                raise RuntimeError('too many outstanding lds ops (%d) at %s' % (len(lg), I.text))

    def pass_hazards(self):
        for it in range(50):
            tr = self.trace()
            pos = 0
            lastw = {}
            lastsrcc = {}
            laststore = {}
            changed = False
            add = {}
            for idx in tr:
                I = self.ins[idx]
                if I.kind == 'label':
                    continue
                pos += I.pre_nop
                need = 0

                def req(p0, ws):
                    have = pos - p0 - 1
                    return max(0, ws - have)
                k = I.kind
                isvalu = k in ('valu', 'trans', 'permlane', 'readlane')
                for r in I.rd:
                    w = lastw.get(r)
                    if w is None:
                        continue
                    p0, wk, wi = w
                    wvalu = wk in ('valu', 'trans', 'permlane', 'readlane')
                    if r[0] in ('v', 'a'):
                        if wvalu and k == 'mfma':
                            need = max(need, req(p0, 2))
                        if wk == 'mfma':
                            if k == 'mfma':
                                if r in I.srcc and wi.wr == I.srcc:
                                    pass
                                elif r in I.srcc and not (r in (set(I.rd) - set(I.srcc))):
                                    need = max(need, req(p0, 6))
                                else:
                                    need = max(need, req(p0, 8))
                            else:
                                need = max(need, req(p0, 8))
                        if wk == 'trans' and isvalu and k != 'trans':
                            need = max(need, req(p0, 1))
                        if wk == 'trans' and k == 'trans':
                            need = max(need, req(p0, 1))
                        if wvalu and k == 'permlane':
                            need = max(need, req(p0, 2))
                        if wvalu and k == 'readlane':
                            need = max(need, req(p0, 1))
                    if r[0] in ('s', 'vcc'):
                        if wvalu:
                            if isvalu:
                                need = max(need, req(p0, 2))
                            elif k in ('vm_ld', 'vm_st', 'vm_dma'):
                                need = max(need, req(p0, 5))
                            else:
                                need = max(need, req(p0, 4))
                    if r[0] == 'm0' and wk == 'salu' and k == 'vm_dma':
                        need = max(need, req(p0, 1))
                for r in I.wr:
                    w = lastw.get(r)
                    if w is not None:
                        p0, wk, wi = w
                        if wk == 'mfma' and k != 'mfma':
                            need = max(need, req(p0, 8))
                        if wk == 'mfma' and k == 'mfma' and not (wi.wr == I.wr):
                            need = max(need, req(p0, 8))
                    if isvalu and r in lastsrcc:
                        need = max(need, req(lastsrcc[r], 3))
                    if r in laststore:
                        need = max(need, req(laststore[r], 2))
                if need > 0:
                    add[idx] = max(add.get(idx, 0), need)
                    pos += need
                for r in I.wr:
                    lastw[r] = (pos, k, I)
                if k == 'mfma':
                    for r in I.srcc:
                        lastsrcc[r] = pos
                if k == 'vm_st':
                    for r in I.srcc:
                        laststore[r] = pos
                pos += I.nstates()
            if not add:
                return
            for idx, n in add.items():
                self.ins[idx].pre_nop += n
        raise RuntimeError('hazard pass did not converge')

    def render(self):
        out = []
        for I in self.ins:
            n = I.pre_nop
            while n > 0:
                c = min(n, 16)
                out.append('    s_nop %d' % (c - 1))
                n -= c
            if I.kind == 'label':
                out.append(I.text)
            else:
                out.append('    ' + I.text + (('  ; ' + I.comment) if I.comment else ''))
        return '\n'.join(out) + '\n'

    def finalize(self):
        self.pass_waitcnt()
        self.materialize_waits()
        for _ in range(5):
            n0 = len(self.ins)
            self.pass_waitcnt_explicit()
            self.materialize_waits()
            if len(self.ins) == n0:
                break
        self.verify_waits()
        self.pass_hazards()
        return self.render()

    def pass_waitcnt_explicit(self):
        tr = self.trace()
        vm = []; lg = []
        for idx in tr:
            I = self.ins[idx]
            if I.kind == 'label':
                continue
            if I.kind == 'wait':
                m = re.search(r'vmcnt\((\d+)\)', I.text)
                if m:
                    n = int(m.group(1))
                    if n < len(vm):
                        vm = vm[len(vm) - n:] if n > 0 else []
                m = re.search(r'lgkmcnt\((\d+)\)', I.text)
                if m:
                    n = int(m.group(1))
                    if n < len(lg):
                        lg = lg[len(lg) - n:] if n > 0 else []
                continue
            touched = set(I.rd) | set(I.wr)
            need_n = None
            for p, o in enumerate(vm):
                if (o['dst'] & touched) or (I.need and o['tag'] in I.need):
                    n = len(vm) - 1 - p
                    need_n = n if need_n is None else min(need_n, n)
            if I.kind in ('vm_ld', 'vm_st', 'vm_dma') and len(vm) >= 60:
                need_n = 56 if need_n is None else min(need_n, 56)
            if need_n is not None:
                need_n = min(need_n, 63)
                I.wait_vm = need_n if I.wait_vm is None else min(I.wait_vm, need_n)
                vm = vm[len(vm) - need_n:] if need_n > 0 else []
            need_l = None
            for p, o in enumerate(lg):
                if o['dst'] & touched:
                    n = len(lg) - 1 - p
                    need_l = n if need_l is None else min(need_l, n)
            if I.kind == 'barrier' and any(o['wr'] for o in lg):
                need_l = 0
            if need_l is not None:
                need_l = min(need_l, 15)
                I.wait_lgkm = need_l if I.wait_lgkm is None else min(I.wait_lgkm, need_l)
                lg = lg[len(lg) - need_l:] if need_l > 0 else []
            if I.kind in ('vm_ld', 'vm_st', 'vm_dma'):
                vm.append(dict(dst=set(I.wr), tag=I.tag))
            elif I.kind == 'ds_rd':
                lg.append(dict(dst=set(I.wr), wr=False))
            elif I.kind == 'ds_wr':
                lg.append(dict(dst=set(), wr=True))


def interleave(mf, fill, lead=0):
    out = []
    nm = len(mf)
    nf = len(fill)
    fi = 0
    for i, m in enumerate(mf):
        out.append(m)
        tgt = (nf * (i + 1) + nm - 1) // nm if nm else nf
        while fi < min(tgt, nf):
            out.append(fill[fi]); fi += 1
    while fi < nf:
        out.append(fill[fi]); fi += 1
    return out
```

```python
import math
from asmfw import Prog

X_BYTES = 8 * 192 * 640 * 2
KV_BYTES = 8 * 32 * 512 * 192 * 2
WQ_BYTES = 640 * 6144 * 2
WS_O_BYTES = 2 * 96 * 192 * 1024
TILE = 24576
RING = 6
LDS1 = TILE * RING
LOOKAHEAD = 5
RS = 12

V_LANE = 1
V_GKV = 4
V_GW = 216
V_XOFF = 10
V_OOFF = 13
V_KP = 14
V_VP = 16
V_WP = 20
V_KW = 24
V_VW = 26
V_MC = 30
V_L = 33
V_CM = 36
V_T = 39
V_S = [48, 96]
V_P = 144
V_A = 168
A_Q = 144

S_SLOT = 60
S_WOFF = 66
S_C = 70
S_THR = 71


def f32bits(x):
    import struct
    return struct.unpack('<I', struct.pack('<f', x))[0]


def gen_k1(name):
    p = Prog()
    e = p.emit
    e(name + ':')
    e('s_cmp_ge_u32 s2, 256')
    e('s_cbranch_scc1 L1_end')
    e('s_load_dwordx16 s[4:19], s[0:1], 0')
    e('s_load_dwordx4 s[20:23], s[0:1], 64')
    e('s_load_dwordx2 s[24:25], s[0:1], 96')
    e('s_and_b32 s67, s2, 7')
    e('s_lshr_b32 s68, s2, 3')
    e('s_lshr_b32 s52, s67, 2')
    e('s_and_b32 s67, s67, 3')
    e('s_lshl_b32 s67, s67, 2')
    e('s_lshr_b32 s69, s68, 3')
    e('s_add_u32 s67, s67, s69')
    e('s_lshl_b32 s54, s67, 1')
    e('s_and_b32 s53, s68, 7')
    e('v_lshrrev_b32 v2, 6, v0')
    e('v_and_b32 v%d, 63, v0' % V_LANE)
    e('v_readfirstlane_b32 s55, v2')
    e('s_waitcnt lgkmcnt(0)')
    e('s_cmp_eq_u32 s52, 0')
    for (dst, a, b_, sz) in ((28, 4, 14, X_BYTES), (32, 10, 20, WQ_BYTES), (36, 10, 20, WQ_BYTES),
                             (40, 6, 16, KV_BYTES), (44, 8, 18, KV_BYTES)):
        e('s_cselect_b32 s%d, s%d, s%d' % (dst, a, b_))
        e('s_cselect_b32 s%d, s%d, s%d' % (dst + 1, a + 1, b_ + 1))
        e('s_mov_b32 s%d, %d' % (dst + 2, sz))
        e('s_mov_b32 s%d, 0x00020000' % (dst + 3))
    e('s_mov_b32 s48, s24')
    e('s_mov_b32 s49, s25')
    e('s_mov_b32 s50, %d' % WS_O_BYTES)
    e('s_mov_b32 s51, 0x00020000')
    e('s_lshl_b32 s56, s53, 5')
    e('s_add_u32 s56, s56, s54')
    e('s_mul_i32 s56, s56, 196608')
    e('s_mul_i32 s57, s54, 384')
    e('s_mul_i32 s58, s53, 245760')
    e('s_mul_i32 s59, s52, 96')
    e('s_mul_i32 s67, s53, 12')
    e('s_add_u32 s59, s59, s67')
    e('s_mul_i32 s67, s55, 3')
    e('s_add_u32 s59, s59, s67')
    e('s_mul_i32 s59, s59, 192')
    e('s_mul_i32 s67, s54, 6')
    e('s_add_u32 s59, s59, s67')
    e('s_lshl_b32 s59, s59, 10')
    for k in range(RING):
        e('s_mov_b32 s%d, %d' % (S_SLOT + k, k * TILE))
    e('s_mul_i32 s%d, s55, 6144' % S_WOFF)
    cs = (192.0 ** -0.5) * math.log2(math.e)
    e('s_mov_b32 s%d, 0x%08x' % (S_C, f32bits(cs)))
    e('s_mov_b32 s%d, 0x%08x' % (S_THR, f32bits(8.0)))
    e('s_getpc_b64 s[74:75]')
    e('L1_pc:')
    e('s_add_u32 s74, s74, L1_rescale-L1_pc')
    e('s_addc_u32 s75, s75, 0')
    L = V_LANE
    e('v_lshrrev_b32 v2, 4, v%d' % L)
    e('v_and_b32 v3, 15, v%d' % L)
    for j in range(3):
        e('v_add_u32 v40, %d, v%d' % (j * 64, L))
        e('v_mul_u32_u24 v41, 2731, v40')
        e('v_lshrrev_b32 v41, 16, v41')
        e('v_mul_u32_u24 v42, 24, v41')
        e('v_sub_u32 v42, v40, v42')
        e('v_xor_b32 v43, v42, v41')
        e('v_and_b32 v43, 7, v43')
        e('v_and_b32 v44, 24, v42')
        e('v_or_b32 v43, v43, v44')
        e('v_mul_u32_u24 v45, 384, v41')
        e('v_lshl_add_u32 v45, v43, 4, v45')
        e('v_add_u32 v45, s%d, v45' % S_WOFF)
        if j:
            e('v_subrev_u32 v45, %d, v45' % (j * 1024))
        e('v_mov_b32 v%d, v45' % (V_GKV + j))
        for half in range(2):
            e('v_and_b32 v43, 2, v41')
            if half:
                e('v_or_b32 v43, 4, v43')
            e('v_xor_b32 v43, v42, v43')
            e('v_and_b32 v43, 7, v43')
            e('v_or_b32 v43, v43, v44')
            e('s_lshl_b32 s67, s55, 4')
            e('v_add_u32 v45, %d, v41' % (half * 8))
            e('v_add_u32 v45, s67, v45')
            e('v_mul_u32_u24 v45, 12288, v45')
            e('v_lshl_add_u32 v45, v43, 4, v45')
            if j:
                e('v_subrev_u32 v45, %d, v45' % (j * 1024))
            e('v_mov_b32 v%d, v45' % (V_GW + half * 3 + j))
    e('s_mul_i32 s67, s55, 48')
    e('v_add_u32 v40, s67, v3')
    e('v_mul_u32_u24 v40, 1280, v40')
    e('v_lshl_add_u32 v%d, v2, 4, v40' % V_XOFF)
    e('v_add_u32 v%d, %d, v%d' % (V_XOFF + 1, 16 * 1280, V_XOFF))
    e('v_add_u32 v%d, %d, v%d' % (V_XOFF + 2, 32 * 1280, V_XOFF))
    e('v_lshlrev_b32 v%d, 4, v%d' % (V_OOFF, L))
    e('v_and_b32 v40, 7, v%d' % L)
    e('v_xor_b32 v40, v40, v2')
    e('v_mul_u32_u24 v41, 384, v3')
    e('v_lshl_add_u32 v%d, v40, 4, v41' % V_KP)
    e('v_xor_b32 v%d, 64, v%d' % (V_KP + 1, V_KP))
    e('v_lshrrev_b32 v40, 2, v3')
    e('v_lshl_add_u32 v40, v2, 2, v40')
    e('v_and_b32 v41, 7, v40')
    e('v_bfe_u32 v42, v3, 1, 1')
    e('v_xor_b32 v41, v41, v42')
    e('v_mul_u32_u24 v40, 384, v40')
    e('v_and_b32 v43, 1, v3')
    e('v_lshl_add_u32 v40, v43, 3, v40')
    for j in range(4):
        e('v_xor_b32 v44, %d, v41' % (2 * j))
        e('v_lshl_add_u32 v%d, v44, 4, v40' % (V_VP + j))
    e('v_lshrrev_b32 v40, 2, v3')
    e('v_lshl_add_u32 v40, v2, 3, v40')
    e('v_bfe_u32 v41, v3, 3, 1')
    e('v_lshlrev_b32 v41, 1, v41')
    e('v_and_b32 v44, 1, v2')
    e('v_lshl_or_b32 v41, v44, 2, v41')
    e('v_xor_b32 v41, v41, v42')
    e('v_mul_u32_u24 v40, 384, v40')
    e('v_lshl_add_u32 v40, v43, 3, v40')
    for j in range(4):
        e('v_xor_b32 v44, %d, v41' % (2 * j))
        e('v_lshl_add_u32 v%d, v44, 4, v40' % (V_WP + j))

    tiles = [('W', t) for t in range(10)] + [('K', 0)]
    for c in range(7):
        tiles += [('K', c + 1), ('V', c)]
    tiles += [('V', 7)]
    NT = len(tiles)
    tindex = {t: i for i, t in enumerate(tiles)}

    def dma(ti):
        nxt = ti >= NT
        kind, idx = tiles[ti % NT]
        slot = S_SLOT + (ti % RING)
        tag = 'T%d' % (ti % NT)
        out = []
        o = lambda s, **kw: out.append((s, kw))
        o('s_add_u32 m0, s%d, s%d' % (slot, S_WOFF))
        if kind == 'W':
            srd = 36 if nxt else 32
            off = idx * 64 * 12288 + (384 if nxt else 0)
            o('s_add_u32 s67, s57, %d' % off)
            for j in range(3):
                o('buffer_load_dwordx4 v%d, s[%d:%d], s67 offen offset:%d lds' % (V_GW + j, srd, srd + 3, j * 1024), tag=tag)
            o('s_add_u32 m0, m0, 3072')
            for j in range(3):
                o('buffer_load_dwordx4 v%d, s[%d:%d], s67 offen offset:%d lds' % (V_GW + 3 + j, srd, srd + 3, j * 1024), tag=tag)
        else:
            assert not nxt
            srd = 40 if kind == 'K' else 44
            o('s_add_u32 s67, s56, %d' % (idx * TILE))
            for j in range(3):
                o('buffer_load_dwordx4 v%d, s[%d:%d], s67 offen offset:%d lds' % (V_GKV + j, srd, srd + 3, j * 1024), tag=tag)
            o('s_add_u32 m0, m0, 3072')
            o('s_add_u32 s67, s67, 3072')
            for j in range(3):
                o('buffer_load_dwordx4 v%d, s[%d:%d], s67 offen offset:%d lds' % (V_GKV + j, srd, srd + 3, j * 1024), tag=tag)
        return out

    def xloads(t):
        out = []
        for ks in range(2):
            for qb in range(3):
                r = V_S[0] + (t % 4) * 24 + (ks * 3 + qb) * 4
                out.append(('buffer_load_dwordx4 v[%d:%d], v%d, s[28:31], s58 offen offset:%d' %
                            (r, r + 3, V_XOFF + qb, (t * 2 + ks) * 64), {}))
        return out

    def enter_tile(ti):
        kind, idx = tiles[ti % NT]
        slot = S_SLOT + (ti % RING)
        out = [('s_barrier', dict(need=['T%d' % (ti % NT)]))]
        if kind == 'K':
            for j in range(2):
                out.append(('v_add_u32 v%d, s%d, v%d' % (V_KW + j, slot, V_KP + j), {}))
        else:
            src = V_VP if kind == 'V' else V_WP
            for j in range(4):
                out.append(('v_add_u32 v%d, s%d, v%d' % (V_VW + j, slot, src + j), {}))
        out += dma(ti + 4)
        return out

    frags = []

    def add_frag(ti, reads, mf):
        frags.append(dict(tile=ti, reads=reads, mf=mf, fill=[], hard_before=[]))

    phase_start = {}

    def acc(db, qb):
        c = (db * 3 + qb) * 4
        return 'a[%d:%d]' % (c, c + 3)

    for t in range(10):
        ti = tindex[('W', t)]
        phase_start[('QP', t)] = len(frags)
        for ks in range(2):
            for dqb in range(12):
                off = (dqb >> 2) * 128 + ks * 12288
                b = V_VW + (dqb & 3)
                reads = [('ds_read_b64_tr_b16', 0, b, off), ('ds_read_b64_tr_b16', 2, b, off + 1536)]
                mf = []
                for qb in range(3):
                    xr = V_S[0] + (t % 4) * 24 + (ks * 3 + qb) * 4
                    src = '0' if (t == 0 and ks == 0) else acc(dqb, qb)
                    mf.append((acc(dqb, qb), 'v[%d:%d]' % (xr, xr + 3), src))
                add_frag(ti, reads, mf)

    def add_qk(c):
        ti = tindex[('K', c)]
        sb = V_S[c % 2]
        for kb in range(4):
            for ds in range(6):
                off = kb * 6144 + (ds >> 1) * 128
                reads = [('ds_read_b128', 0, V_KW + (ds & 1), off)]
                mf = []
                for qb in range(3):
                    d = sb + (kb * 3 + qb) * 4
                    q = A_Q + (ds * 3 + qb) * 4
                    dst = 'v[%d:%d]' % (d, d + 3)
                    mf.append((dst, 'a[%d:%d]' % (q, q + 3), '0' if ds == 0 else dst))
                add_frag(ti, reads, mf)

    def add_pv(c):
        ti = tindex[('V', c)]
        for ks in range(2):
            for db in range(12):
                off = (db >> 2) * 128 + ks * 12288
                b = V_VW + (db & 3)
                reads = [('ds_read_b64_tr_b16', 0, b, off), ('ds_read_b64_tr_b16', 2, b, off + 6144)]
                mf = []
                for qb in range(3):
                    pr = V_P + (ks * 3 + qb) * 4
                    src = '0' if (c == 0 and ks == 0) else acc(db, qb)
                    mf.append((acc(db, qb), 'v[%d:%d]' % (pr, pr + 3), src))
                add_frag(ti, reads, mf)

    phase_start[('A', -1)] = len(frags)
    add_qk(0)
    for c in range(8):
        phase_start[('A', c)] = len(frags)
        if c < 7:
            add_qk(c + 1)
        phase_start[('B', c)] = len(frags)
        add_pv(c)
    NF = len(frags)
    assert NF % RS == 0, NF
    phase_start['END'] = NF

    def maxtree(c, dst):
        sb = V_S[c % 2]
        out = []
        for step in range(8):
            for qb in range(3):
                regs = [sb + (kb * 3 + qb) * 4 + r for kb in range(4) for r in range(4)]
                if step == 0:
                    out.append(('v_max3_f32 v%d, v%d, v%d, v%d' % (dst + qb, regs[0], regs[1], regs[2]), {}))
                elif step < 7:
                    out.append(('v_max3_f32 v%d, v%d, v%d, v%d' % (dst + qb, dst + qb, regs[2 * step + 1], regs[2 * step + 2]), {}))
                else:
                    out.append(('v_max_f32 v%d, v%d, v%d' % (dst + qb, dst + qb, regs[15]), {}))
        return out

    def xlane(op, src, tmp):
        out = []
        for sw in ('v_permlane16_swap_b32', 'v_permlane32_swap_b32'):
            for qb in range(3):
                out.append(('v_mov_b32 v%d, v%d' % (tmp + qb, src + qb), {}))
            for qb in range(3):
                out.append(('%s v%d, v%d' % (sw, src + qb, tmp + qb), {}))
            for qb in range(3):
                out.append(('%s v%d, v%d, v%d' % (op, src + qb, src + qb, tmp + qb), {}))
        return out

    def exps(c):
        sb = V_S[c % 2]
        out = []
        for kb in range(4):
            for qb in range(3):
                base = sb + (kb * 3 + qb) * 4
                for r in range(4):
                    out.append(('v_fma_f32 v%d, v%d, s%d, -v%d' % (base + r, base + r, S_C, V_MC + qb), {}))
                for r in range(4):
                    out.append(('v_exp_f32 v%d, v%d' % (base + r, base + r), {}))
            if kb >= 1:
                out += cvts(c, kb - 1)
        out += cvts(c, 3)
        return out

    def cvts(c, kb):
        sb = V_S[c % 2]
        out = []
        for qb in range(3):
            base = sb + (kb * 3 + qb) * 4
            pr = V_P + ((kb >> 1) * 3 + qb) * 4 + (kb & 1) * 2
            out.append(('v_cvt_pk_bf16_f32 v%d, v%d, v%d' % (pr, base, base + 1), {}))
            out.append(('v_cvt_pk_bf16_f32 v%d, v%d, v%d' % (pr + 1, base + 2, base + 3), {}))
        return out

    def sums(c):
        sb = V_S[c % 2]
        out = []
        for kb in range(4):
            for r in range(4):
                for qb in range(3):
                    reg = sb + (kb * 3 + qb) * 4 + r
                    if c == 0 and kb == 0 and r == 0:
                        out.append(('v_mov_b32 v%d, v%d' % (V_L + qb, reg), {}))
                    else:
                        out.append(('v_add_f32 v%d, v%d, v%d' % (V_L + qb, V_L + qb, reg), {}))
        return out

    def check():
        out = []
        for qb in range(3):
            out.append(('v_fma_f32 v%d, v%d, s%d, -v%d' % (V_T + qb, V_CM + qb, S_C, V_MC + qb), {}))
        out.append(('v_max3_f32 v%d, v%d, v%d, v%d' % (V_T, V_T, V_T + 1, V_T + 2), {}))
        out.append(('v_cmp_lt_f32 s[78:79], s%d, v%d' % (S_THR, V_T), {}))
        return out

    phase_fill = {}
    hard = {}

    qconv = []
    for j in range(6):
        for qb in range(3):
            t0 = V_S[1] + ((j * 3 + qb) % 4) * 12
            for h2 in range(2):
                c0 = ((2 * j + h2) * 3 + qb) * 4
                for r in range(4):
                    qconv.append(('v_accvgpr_read_b32 v%d, a%d' % (t0 + h2 * 4 + r, c0 + r), {}))
            X = t0 + 8
            qconv.append(('v_cvt_pk_bf16_f32 v%d, v%d, v%d' % (X, t0, t0 + 1), {}))
            qconv.append(('v_cvt_pk_bf16_f32 v%d, v%d, v%d' % (X + 1, t0 + 2, t0 + 3), {}))
            qconv.append(('v_cvt_pk_bf16_f32 v%d, v%d, v%d' % (X + 2, t0 + 4, t0 + 5), {}))
            qconv.append(('v_cvt_pk_bf16_f32 v%d, v%d, v%d' % (X + 3, t0 + 6, t0 + 7), {}))
            qconv.append(('v_permlane32_swap_b32 v%d, v%d' % (X, X + 2), {}))
            qconv.append(('v_permlane32_swap_b32 v%d, v%d' % (X + 1, X + 3), {}))
            qconv.append(('v_permlane16_swap_b32 v%d, v%d' % (X, X + 2), {}))
            qconv.append(('v_permlane16_swap_b32 v%d, v%d' % (X + 1, X + 3), {}))
            q = A_Q + (j * 3 + qb) * 4
            for r in range(4):
                qconv.append(('v_accvgpr_write_b32 a%d, v%d' % (q + r, X + r), {}))
    hard[phase_start[('A', -1)]] = qconv

    for c in range(8):
        fa = []
        if c == 0:
            fa += maxtree(0, V_CM) + xlane('v_max_f32', V_CM, V_T)
            for qb in range(3):
                fa.append(('v_mul_f32 v%d, s%d, v%d' % (V_MC + qb, S_C, V_CM + qb), {}))
        fa += exps(c)
        phase_fill[('A', c)] = fa
        fb = sums(c)
        if c < 7:
            fb = fb[:24] + maxtree(c + 1, V_CM) + fb[24:] + check()
        phase_fill[('B', c)] = fb

    def emit_list(lst):
        for (s, kw) in lst:
            e(s, **kw)

    def frag_reads(fi, nxt_iter=False):
        f = frags[fi % NF]
        out = []
        ti = f['tile'] + (NT if fi >= NF else 0)
        if fi % NF == 0 or frags[(fi % NF) - 1]['tile'] != f['tile']:
            out += enter_tile(ti)
        r = V_A + (fi % RS) * 4
        for (op, ro, base, off) in f['reads']:
            if op == 'ds_read_b128':
                out.append(('ds_read_b128 v[%d:%d], v%d offset:%d' % (r, r + 3, base, off), {}))
            else:
                out.append(('%s v[%d:%d], v%d offset:%d' % (op, r + ro, r + ro + 1, base, off), {}))
        return out

    for ti in range(4):
        emit_list(dma(ti))
    for t in range(4):
        emit_list(xloads(t))
    for fi in range(LOOKAHEAD):
        emit_list(frag_reads(fi))
    e('s_mov_b32 s76, 0')
    e('L1_head:')
    p.loop_begin()
    e('s_cmp_eq_u32 s76, 1')
    e('s_cselect_b32 s38, 0, %d' % WQ_BYTES)

    order = [('QP', t) for t in range(10)] + [('A', -1)]
    for c in range(8):
        order += [('A', c), ('B', c)]
    for pi, ph in enumerate(order):
        a = phase_start[ph]
        b_ = phase_start[order[pi + 1]] if pi + 1 < len(order) else NF
        fill = phase_fill.get(ph, [])
        if a in hard:
            emit_list(hard[a])
        if ph[0] == 'QP' and 1 <= ph[1] and ph[1] + 3 < 10:
            emit_list(xloads(ph[1] + 3))
        nm = (b_ - a) * 3
        fi_done = 0
        mcount = 0
        for fi in range(a, b_):
            emit_list(frag_reads(fi + LOOKAHEAD))
            r = V_A + (fi % RS) * 4
            for (dst, bsrc, csrc) in frags[fi]['mf']:
                e('v_mfma_f32_16x16x32_bf16 %s, v[%d:%d], %s, %s' % (dst, r, r + 3, bsrc, csrc))
                mcount += 1
                tgt = (len(fill) * mcount + nm - 1) // nm
                while fi_done < tgt:
                    s, kw = fill[fi_done]
                    e(s, **kw)
                    fi_done += 1
        while fi_done < len(fill):
            s, kw = fill[fi_done]
            e(s, **kw)
            fi_done += 1
        if ph[0] == 'B' and ph[1] < 7:
            e('s_cmp_lg_u64 s[78:79], 0')
            e('s_cbranch_scc0 L1_skip%d' % ph[1])
            e('s_swappc_b64 s[72:73], s[74:75]')
            e('L1_skip%d:' % ph[1])

    for t in range(4):
        emit_list(xloads(t))
    emit_list(xlane('v_add_f32', V_L, V_T))
    for qb in range(3):
        e('v_rcp_f32 v%d, v%d' % (V_T + 3 + qb, V_L + qb))
    TMP = 144
    n = 0
    for j in range(6):
        for qb in range(3):
            t0 = TMP + (n % 2) * 12
            n += 1
            for h2 in range(2):
                c0 = ((2 * j + h2) * 3 + qb) * 4
                for r in range(4):
                    e('v_accvgpr_read_b32 v%d, a%d' % (t0 + h2 * 4 + r, c0 + r))
            for r in range(8):
                e('v_mul_f32 v%d, v%d, v%d' % (t0 + r, t0 + r, V_T + 3 + qb))
            X = t0 + 8
            e('v_cvt_pk_bf16_f32 v%d, v%d, v%d' % (X, t0, t0 + 1))
            e('v_cvt_pk_bf16_f32 v%d, v%d, v%d' % (X + 1, t0 + 2, t0 + 3))
            e('v_cvt_pk_bf16_f32 v%d, v%d, v%d' % (X + 2, t0 + 4, t0 + 5))
            e('v_cvt_pk_bf16_f32 v%d, v%d, v%d' % (X + 3, t0 + 6, t0 + 7))
            e('v_permlane32_swap_b32 v%d, v%d' % (X, X + 2))
            e('v_permlane32_swap_b32 v%d, v%d' % (X + 1, X + 3))
            e('v_permlane16_swap_b32 v%d, v%d' % (X, X + 2))
            e('v_permlane16_swap_b32 v%d, v%d' % (X + 1, X + 3))
            e('s_add_u32 s67, s59, %d' % (qb * 196608 + j * 1024))
            e('buffer_store_dwordx4 v[%d:%d], v%d, s[48:51], s67 offen' % (X, X + 3, V_OOFF))
    e('s_add_u32 s56, s56, 196608')
    e('s_add_u32 s57, s57, 384')
    e('s_add_u32 s59, s59, 6144')
    rot = NT % RING
    tmp = [80 + k for k in range(RING)]
    for k in range(RING):
        e('s_mov_b32 s%d, s%d' % (tmp[k], S_SLOT + (k + rot) % RING))
    for k in range(RING):
        e('s_mov_b32 s%d, s%d' % (S_SLOT + k, tmp[k]))
    e('s_add_u32 s76, s76, 1')
    e('s_cmp_lt_u32 s76, 2')
    e('s_cbranch_scc1 L1_head')
    p.loop_end(2)
    e('s_waitcnt vmcnt(0) lgkmcnt(0)')
    e('L1_end:')
    e('s_endpgm')
    body = p.finalize()

    r = []
    o = r.append
    o('L1_rescale:')
    o('    s_nop 15')
    for sw in ('v_permlane16_swap_b32', 'v_permlane32_swap_b32'):
        for qb in range(3):
            o('    v_mov_b32 v%d, v%d' % (V_T + qb, V_CM + qb))
        o('    s_nop 1')
        for qb in range(3):
            o('    %s v%d, v%d' % (sw, V_CM + qb, V_T + qb))
        o('    s_nop 1')
        for qb in range(3):
            o('    v_max_f32 v%d, v%d, v%d' % (V_CM + qb, V_CM + qb, V_T + qb))
        o('    s_nop 1')
    for qb in range(3):
        o('    v_mul_f32 v%d, s%d, v%d' % (V_T + qb, S_C, V_CM + qb))
    for qb in range(3):
        o('    v_max_f32 v%d, v%d, v%d' % (V_T + qb, V_T + qb, V_MC + qb))
    for qb in range(3):
        o('    v_sub_f32 v%d, v%d, v%d' % (V_T + 3 + qb, V_MC + qb, V_T + qb))
    for qb in range(3):
        o('    v_exp_f32 v%d, v%d' % (V_T + 3 + qb, V_T + 3 + qb))
    for qb in range(3):
        o('    v_mov_b32 v%d, v%d' % (V_MC + qb, V_T + qb))
    o('    s_nop 1')
    for qb in range(3):
        o('    v_mul_f32 v%d, v%d, v%d' % (V_L + qb, V_L + qb, V_T + 3 + qb))
    for db in range(12):
        for qb in range(3):
            c0 = (db * 3 + qb) * 4
            for rr in range(4):
                o('    v_accvgpr_read_b32 v%d, a%d' % (V_T + 6 + (rr & 1), c0 + rr))
                o('    v_mul_f32 v%d, v%d, v%d' % (V_T + 6 + (rr & 1), V_T + 6 + (rr & 1), V_T + 3 + qb))
                o('    v_accvgpr_write_b32 a%d, v%d' % (c0 + rr, V_T + 6 + (rr & 1)))
    o('    s_nop 3')
    o('    s_setpc_b64 s[72:73]')
    return body + '\n'.join(r) + '\n'


K1_DESC = '''.amdhsa_kernel {name}
  .amdhsa_next_free_vgpr 512
  .amdhsa_next_free_sgpr 96
  .amdhsa_accum_offset 256
  .amdhsa_group_segment_fixed_size 0
  .amdhsa_kernarg_size 104
  .amdhsa_user_sgpr_count 2
  .amdhsa_user_sgpr_kernarg_segment_ptr 1
  .amdhsa_system_sgpr_workgroup_id_x 1
.end_amdhsa_kernel
'''

if __name__ == '__main__':
    print(gen_k1('k1_kernel'))
```

```python
from asmfw import Prog

WS_O_BYTES = 2 * 96 * 192 * 1024
WO_BYTES = 6144 * 640 * 2
OUT_BYTES = 8 * 192 * 1280 * 2
LDS2 = 8 * 15360


def gen_k2(name):
    p = Prog()
    e = p.emit
    e(name + ':')
    e('s_cmp_ge_u32 s2, 256')
    e('s_cbranch_scc1 L2_end')
    e('s_load_dwordx2 s[4:5], s[0:1], 32')
    e('s_load_dwordx2 s[6:7], s[0:1], 72')
    e('s_load_dwordx2 s[20:21], s[0:1], 80')
    e('s_load_dwordx2 s[22:23], s[0:1], 96')
    e('s_and_b32 s24, s2, 7')
    e('s_lshr_b32 s25, s2, 3')
    e('s_lshr_b32 s26, s24, 2')
    e('s_and_b32 s27, s24, 3')
    e('s_lshl_b32 s27, s27, 2')
    e('s_lshr_b32 s28, s25, 3')
    e('s_add_u32 s27, s27, s28')
    e('s_and_b32 s28, s25, 7')
    e('v_lshrrev_b32 v1, 6, v0')
    e('v_and_b32 v2, 63, v0')
    e('v_readfirstlane_b32 s29, v1')
    e('s_waitcnt lgkmcnt(0)')
    e('s_cmp_eq_u32 s26, 0')
    e('s_cselect_b32 s8, s4, s6')
    e('s_cselect_b32 s9, s5, s7')
    e('s_mov_b32 s10, %d' % WO_BYTES)
    e('s_mov_b32 s11, 0x00020000')
    e('s_mov_b32 s12, s22')
    e('s_mov_b32 s13, s23')
    e('s_mov_b32 s14, %d' % WS_O_BYTES)
    e('s_mov_b32 s15, 0x00020000')
    e('s_mov_b32 s16, s20')
    e('s_mov_b32 s17, s21')
    e('s_mov_b32 s18, %d' % OUT_BYTES)
    e('s_mov_b32 s19, 0x00020000')
    e('s_mul_i32 s30, s26, 96')
    e('s_mul_i32 s31, s27, 6')
    e('s_add_u32 s30, s30, s31')
    e('s_mul_i32 s30, s30, 196608')
    e('s_mul_i32 s31, s29, 24576')
    e('s_add_u32 s30, s30, s31')
    e('s_mul_i32 s31, s29, %d' % (24 * 32 * 1280))
    e('s_mul_i32 s32, s28, 160')
    e('s_add_u32 s31, s31, s32')
    e('s_mul_i32 s33, s29, 15360')
    e('v_lshlrev_b32 v8, 4, v2')
    for j in range(1, 6):
        e('v_add_u32 v%d, %d, v8' % (8 + j, j * 196608))
    for j in range(5):
        e('v_add_u32 v3, %d, v2' % (j * 64))
        e('v_mul_u32_u24 v4, 52429, v3')
        e('v_lshrrev_b32 v4, 19, v4')
        e('v_mul_u32_u24 v5, 10, v4')
        e('v_sub_u32 v5, v3, v5')
        e('v_and_b32 v6, 19, v4')
        e('v_bfe_u32 v7, v4, 3, 1')
        e('v_lshl_or_b32 v6, v7, 2, v6')
        e('v_bfe_u32 v7, v4, 2, 1')
        e('v_lshl_or_b32 v6, v7, 3, v6')
        e('v_mul_u32_u24 v6, 1280, v6')
        e('v_lshl_add_u32 v6, v5, 4, v6')
        if 0 < j < 4:
            e('v_subrev_u32 v6, %d, v6' % (j * 1024))
        e('v_mov_b32 v%d, v6' % (14 + j))
    e('v_and_b32 v3, 15, v2')
    e('v_lshrrev_b32 v4, 4, v2')
    e('v_lshrrev_b32 v5, 2, v3')
    e('v_and_b32 v6, 1, v4')
    e('v_lshl_add_u32 v5, v6, 2, v5')
    e('v_lshrrev_b32 v6, 1, v4')
    e('v_lshl_add_u32 v5, v6, 4, v5')
    e('v_mul_u32_u24 v5, 160, v5')
    e('v_and_b32 v6, 3, v3')
    e('v_lshl_add_u32 v5, v6, 3, v5')
    e('v_add_u32 v19, s33, v5')

    BREG = 24
    AREG = 96

    def issue(step_mod, tagid):
        e('s_add_u32 m0, s33, %d' % (step_mod * 5120))
        for j in range(4):
            e('buffer_load_dwordx4 v%d, s[8:11], s35 offen offset:%d lds' % (14 + j, j * 1024), tag=tagid)
        e('s_add_u32 m0, s33, %d' % (step_mod * 5120 + 4096))
        e('buffer_load_dwordx4 v18, s[8:11], s35 offen lds', tag=tagid)
        for j in range(6):
            r = BREG + step_mod * 24 + j * 4
            e('buffer_load_dwordx4 v[%d:%d], v%d, s[12:15], s34 offen' % (r, r + 3, 8 + j))
        e('s_add_u32 s34, s34, 1024')
        e('s_add_u32 s35, s35, %d' % (32 * 1280))

    def trread(step_mod, nb, tagid):
        r = AREG + nb * 4
        off = step_mod * 5120 + nb * 32
        e('ds_read_b64_tr_b16 v[%d:%d], v19 offset:%d' % (r, r + 1, off), need=[tagid])
        e('ds_read_b64_tr_b16 v[%d:%d], v19 offset:%d' % (r + 2, r + 3, off + 1280))

    def compute(step_mod, first, nxt_tag):
        for nb in range(5):
            a = AREG + nb * 4
            for j in range(6):
                b = BREG + step_mod * 24 + j * 4
                c = (nb * 6 + j) * 4
                src = '0' if first else 'a[%d:%d]' % (c, c + 3)
                e('v_mfma_f32_16x16x32_bf16 a[%d:%d], v[%d:%d], v[%d:%d], %s' % (c, c + 3, a, a + 3, b, b + 3, src))
            if nxt_tag is not None:
                trread((step_mod + 1) % 3, nb, nxt_tag)

    e('s_mov_b32 s34, s30')
    e('s_mov_b32 s35, s31')
    issue(0, 't0')
    issue(1, 't1')
    for nb in range(5):
        trread(0, nb, 't0')
    issue(2, 't2')
    compute(0, True, 't1')
    issue(0, 't0')
    compute(1, False, 't2')
    issue(1, 't1')
    compute(2, False, 't0')
    e('s_mov_b32 s36, 0')
    e('L2_loop:')
    p.loop_begin()
    issue(2, 't2')
    compute(0, False, 't1')
    issue(0, 't0')
    compute(1, False, 't2')
    issue(1, 't1')
    compute(2, False, 't0')
    e('s_add_u32 s36, s36, 1')
    e('s_cmp_lt_u32 s36, 6')
    e('s_cbranch_scc1 L2_loop')
    p.loop_end(2)
    issue(2, 't2')
    compute(0, False, 't1')
    compute(1, False, 't2')
    compute(2, False, None)

    e('v_lshlrev_b32 v20, 4, v2')
    e('s_lshl_b32 s37, s29, 10')
    e('v_add_u32 v21, s37, v20')
    e('v_add_u32 v7, 0x10000, v21')
    e('v_and_b32 v3, 15, v2')
    e('v_lshrrev_b32 v4, 4, v2')
    e('v_mul_u32_u24 v22, 2560, v3')
    e('v_lshl_add_u32 v22, v4, 3, v22')
    e('s_mul_i32 s38, s27, %d' % (96 * 1280))
    e('s_mul_i32 s39, s26, 640')
    e('s_add_u32 s38, s38, s39')
    e('s_mul_i32 s39, s28, 80')
    e('s_add_u32 s38, s38, s39')
    e('s_lshl_b32 s38, s38, 1')
    for ph in range(2):
        e('s_barrier')
        for tl in range(15):
            t = ph * 15 + tl
            r = 24 + (tl % 8) * 4
            for q in range(4):
                e('v_accvgpr_read_b32 v%d, a%d' % (r + q, t * 4 + q))
            if tl < 8:
                e('ds_write_b128 v21, v[%d:%d] offset:%d' % (r, r + 3, tl * 8192))
            else:
                e('ds_write_b128 v7, v[%d:%d] offset:%d' % (r, r + 3, (tl - 8) * 8192))
        e('s_barrier')
        for half in range(2):
            e('s_add_u32 s40, s29, %d' % (8 * half))
            e('s_lshl_b32 s41, s40, 13')
            e('v_add_u32 v23, s41, v20')
            base = 64 + half * 32
            for w in range(8):
                e('ds_read_b128 v[%d:%d], v23 offset:%d' % (base + w * 4, base + w * 4 + 3, w * 1024))
            e('s_add_u32 s42, s40, %d' % (ph * 15))
            e('s_mul_i32 s43, s42, 43')
            e('s_lshr_b32 s43, s43, 8')
            e('s_mul_i32 s44, s43, 6')
            e('s_sub_u32 s44, s42, s44')
            e('s_mul_i32 s44, s44, %d' % (16 * 1280 * 2))
            e('s_lshl_b32 s43, s43, 5')
            e('s_add_u32 s44, s44, s43')
            e('s_add_u32 s44, s44, s38')
            e('s_cmp_eq_u32 s40, 15')
            e('s_cselect_b32 s44, 0x7f000000, s44')
            for q in range(4):
                e('v_add_f32 v%d, v%d, v%d' % (base + q, base + q, base + 4 + q))
                e('v_add_f32 v%d, v%d, v%d' % (base + 8 + q, base + 8 + q, base + 12 + q))
                e('v_add_f32 v%d, v%d, v%d' % (base + 16 + q, base + 16 + q, base + 20 + q))
                e('v_add_f32 v%d, v%d, v%d' % (base + 24 + q, base + 24 + q, base + 28 + q))
            for q in range(4):
                e('v_add_f32 v%d, v%d, v%d' % (base + q, base + q, base + 8 + q))
                e('v_add_f32 v%d, v%d, v%d' % (base + 16 + q, base + 16 + q, base + 24 + q))
            for q in range(4):
                e('v_add_f32 v%d, v%d, v%d' % (base + q, base + q, base + 16 + q))
            e('v_cvt_pk_bf16_f32 v%d, v%d, v%d' % (base + 4, base, base + 1))
            e('v_cvt_pk_bf16_f32 v%d, v%d, v%d' % (base + 5, base + 2, base + 3))
            e('buffer_store_dwordx2 v[%d:%d], v22, s[16:19], s44 offen' % (base + 4, base + 5))
    e('s_waitcnt vmcnt(0)')
    e('L2_end:')
    e('s_endpgm')
    return p.finalize()


K2_DESC = '''.amdhsa_kernel {name}
  .amdhsa_next_free_vgpr 248
  .amdhsa_next_free_sgpr 64
  .amdhsa_accum_offset 128
  .amdhsa_group_segment_fixed_size 0
  .amdhsa_kernarg_size 104
  .amdhsa_user_sgpr_count 2
  .amdhsa_user_sgpr_kernarg_segment_ptr 1
  .amdhsa_system_sgpr_workgroup_id_x 1
.end_amdhsa_kernel
'''

if __name__ == '__main__':
    print(gen_k2('k2_kernel'))
```

```python
import sys
from gen_k2 import gen_k2, K2_DESC, LDS2
from gen_k1 import gen_k1, K1_DESC, LDS1
HEADER = open('concat_heads__gqa_block_cached__gqa_block_cached__near_ridge.s.ref').read().split('; Override launch')[0]
def build(parts):
    s = HEADER
    for n, l, b, d in parts:
        s += l + '\n'
    s += '.amdgcn_target "amdgcn-amd-amdhsa--gfx950"\n.text\n'
    for n, l, b, d in parts:
        s += '.globl %s\n.p2align 8\n.type %s,@function\n' % (n, n)
        s += b
    s += '.section .rodata,"a"\n'
    for n, l, b, d in parts:
        s += '.p2align 6\n' + d.format(name=n)
    return s
if __name__ == '__main__':
    p1 = ('attn_kernel', '; @launch kernel=attn_kernel grid=(256,1,1) block=(256,1,1) lds=%d' % LDS1, gen_k1('attn_kernel'), K1_DESC)
    p2 = ('oproj_kernel', '; @launch kernel=oproj_kernel grid=(256,1,1) block=(512,1,1) lds=%d' % LDS2, gen_k2('oproj_kernel'), K2_DESC)
    s = build([p1, p2])
    open('full.s', 'w').write(s)
    open('concat_heads__gqa_block_cached__gqa_block_cached__near_ridge.s', 'w').write(s)
```

```python
import re

TRANS = ('v_exp_f32', 'v_log_f32', 'v_rcp_f32', 'v_rsq_f32', 'v_sqrt_f32', 'v_sin_f32', 'v_cos_f32')

_reg_re = re.compile(r'^(-|abs\(|-abs\()?([vas])(\d+)\)?$')
_rng_re = re.compile(r'^([vas])\[(\d+):(\d+)\]$')


def regs_of(tok):
    tok = tok.strip()
    m = _rng_re.match(tok)
    if m:
        return [(m.group(1), i) for i in range(int(m.group(2)), int(m.group(3)) + 1)]
    m = _reg_re.match(tok)
    if m:
        return [(m.group(2), int(m.group(3)))]
    if tok == 'vcc':
        return [('vcc', 0)]
    if tok == 'm0':
        return [('m0', 0)]
    if tok == 'exec':
        return [('exec', 0)]
    return []


class Inst:
    __slots__ = ('text', 'op', 'rd', 'wr', 'kind', 'tag', 'need', 'pre_nop', 'wait_vm', 'wait_lgkm', 'srcc', 'comment')

    def __init__(self, text, tag=None, need=None, comment=None):
        self.text = text
        self.tag = tag
        self.need = need
        self.pre_nop = 0
        self.wait_vm = None
        self.wait_lgkm = None
        self.srcc = []
        self.comment = comment
        self.parse()

    def parse(self):
        t = self.text.strip()
        if t.endswith(':'):
            self.op = 'label'; self.kind = 'label'; self.rd = []; self.wr = []
            return
        parts = t.split(None, 1)
        op = parts[0]
        self.op = op
        rest = parts[1] if len(parts) > 1 else ''
        ops = [x.strip() for x in rest.split(',')] if rest else []
        mods = []
        if ops:
            last = ops[-1].split()
            if last:
                ops[-1] = last[0]
                mods = last[1:]
        rd, wr = [], []
        k = 'other'
        if op.startswith('v_mfma'):
            k = 'mfma'
            wr = regs_of(ops[0]); rd = regs_of(ops[1]) + regs_of(ops[2]) + regs_of(ops[3])
            self.srcc = regs_of(ops[3])
        elif op.startswith('v_permlane') and 'swap' in op:
            k = 'permlane'
            wr = regs_of(ops[0]) + regs_of(ops[1]); rd = list(wr)
        elif op.startswith('v_cmp'):
            k = 'valu'
            wr = regs_of(ops[0]); rd = sum((regs_of(x) for x in ops[1:]), [])
        elif op.startswith('v_readfirstlane') or op.startswith('v_readlane'):
            k = 'readlane'
            wr = regs_of(ops[0]); rd = sum((regs_of(x) for x in ops[1:]), [])
        elif op.startswith('v_'):
            k = 'trans' if op.split('_e')[0] in TRANS or op in TRANS else 'valu'
            wr = regs_of(ops[0]); rd = sum((regs_of(x) for x in ops[1:]), [])
            if op.startswith('v_fmac') or op.startswith('v_pk_fmac'):
                rd += wr
            if op.startswith('v_add_co') or op.startswith('v_addc_co'):
                wr += regs_of(ops[1])
        elif op.startswith('ds_bpermute'):
            k = 'ds_rd'
            wr = regs_of(ops[0]); rd = regs_of(ops[1]) + regs_of(ops[2])
        elif op.startswith('ds_read'):
            k = 'ds_rd'
            wr = regs_of(ops[0]); rd = regs_of(ops[1])
        elif op.startswith('ds_write'):
            k = 'ds_wr'
            rd = sum((regs_of(x) for x in ops), [])
        elif op.startswith('buffer_load'):
            if 'lds' in mods:
                k = 'vm_dma'
                rd = sum((regs_of(x) for x in ops), []) + [('m0', 0)]
            else:
                k = 'vm_ld'
                wr = regs_of(ops[0]); rd = sum((regs_of(x) for x in ops[1:]), [])
        elif op.startswith('buffer_store'):
            k = 'vm_st'
            rd = sum((regs_of(x) for x in ops), [])
            self.srcc = regs_of(ops[0])
        elif op.startswith('s_load'):
            k = 'smem'
            wr = regs_of(ops[0]); rd = regs_of(ops[1])
        elif op == 's_nop':
            k = 'nop'
        elif op == 's_waitcnt':
            k = 'wait'
        elif op == 's_barrier':
            k = 'barrier'
        elif op.startswith('s_cbranch') or op == 's_branch' or op == 's_endpgm':
            k = 'branch'
        elif op.startswith('s_cmp'):
            k = 'salu'
            rd = sum((regs_of(x) for x in ops), [])
        elif op in ('s_setprio', 's_sleep'):
            k = 'salu'
        elif op == 's_swappc_b64':
            k = 'salu'
            wr = regs_of(ops[0]); rd = regs_of(ops[1])
        elif op == 's_setpc_b64':
            k = 'branch'
            rd = regs_of(ops[0])
        elif op.startswith('s_'):
            k = 'salu'
            wr = regs_of(ops[0]); rd = sum((regs_of(x) for x in ops[1:]), [])
        else:
            raise ValueError('unknown instruction: ' + t)
        self.kind = k
        self.rd = rd
        self.wr = wr

    def nstates(self):
        if self.kind == 'label':
            return 0
        if self.kind == 'nop':
            return int(self.text.split()[1]) + 1
        return 1


class Prog:
    def __init__(self):
        self.ins = []
        self.segs = []
        self._loop_start = None

    def emit(self, text, tag=None, need=None, comment=None):
        i = Inst(text, tag, need, comment)
        self.ins.append(i)
        return i

    def __call__(self, text, **kw):
        return self.emit(text, **kw)

    def loop_begin(self):
        self._loop_start = len(self.ins)

    def loop_end(self, reps=2):
        self.segs.append((self._loop_start, len(self.ins), reps))
        self._loop_start = None

    def trace(self):
        tr = []
        pos = 0
        for (a, b, r) in self.segs:
            tr += list(range(pos, a))
            for _ in range(r):
                tr += list(range(a, b))
            pos = b
        tr += list(range(pos, len(self.ins)))
        return tr

    def pass_waitcnt(self):
        tr = self.trace()
        vm = []
        lg = []
        smem_pending = False
        smem_dst = set()
        for idx in tr:
            I = self.ins[idx]
            if I.kind == 'label':
                continue
            touched = set(I.rd) | set(I.wr)
            need_n = None
            for p, o in enumerate(vm):
                hit = bool(o['dst'] & touched) or (I.need and o['tag'] in I.need)
                if hit:
                    n = len(vm) - 1 - p
                    need_n = n if need_n is None else min(need_n, n)
            if I.kind == 'wait' and 'vmcnt(0)' in I.text:
                vm = []
            if I.kind in ('vm_ld', 'vm_st', 'vm_dma') and len(vm) >= 60:
                need_n = 56 if need_n is None else min(need_n, 56)
            if need_n is not None:
                need_n = min(need_n, 63)
                I.wait_vm = need_n if I.wait_vm is None else min(I.wait_vm, need_n)
                vm = vm[len(vm) - need_n:] if need_n > 0 else []
            need_l = None
            for p, o in enumerate(lg):
                if o['dst'] & touched:
                    n = len(lg) - 1 - p
                    need_l = n if need_l is None else min(need_l, n)
            if smem_pending and (smem_dst & touched):
                need_l = 0
            if I.kind == 'barrier':
                if any(o['wr'] for o in lg):
                    need_l = 0
            if I.kind == 'wait' and 'lgkmcnt(0)' in I.text:
                lg = []; smem_pending = False; smem_dst = set()
            if I.kind in ('ds_rd', 'ds_wr') and len(lg) >= 15:
                need_l = 12 if need_l is None else min(need_l, 12)
            if need_l is not None:
                if smem_pending:
                    need_l = 0
                need_l = min(need_l, 15)
                I.wait_lgkm = need_l if I.wait_lgkm is None else min(I.wait_lgkm, need_l)
                lg = lg[len(lg) - need_l:] if need_l > 0 else []
                if need_l == 0:
                    smem_pending = False; smem_dst = set()
            if I.kind in ('vm_ld', 'vm_st', 'vm_dma'):
                vm.append(dict(dst=set(I.wr), tag=I.tag))
            elif I.kind == 'ds_rd':
                lg.append(dict(dst=set(I.wr), wr=False))
            elif I.kind == 'ds_wr':
                lg.append(dict(dst=set(), wr=True))
            elif I.kind == 'smem':
                smem_pending = True; smem_dst |= set(I.wr)

    def materialize_waits(self):
        out = []
        idxmap = {}
        for i, I in enumerate(self.ins):
            idxmap[i] = len(out)
            if I.wait_vm is not None or I.wait_lgkm is not None:
                s = 's_waitcnt'
                if I.wait_vm is not None:
                    s += ' vmcnt(%d)' % I.wait_vm
                if I.wait_lgkm is not None:
                    s += ' lgkmcnt(%d)' % I.wait_lgkm
                out.append(Inst(s))
                I.wait_vm = I.wait_lgkm = None
            out.append(I)
        idxmap[len(self.ins)] = len(out)
        self.segs = [(idxmap[a], idxmap[b], r) for (a, b, r) in self.segs]
        self.ins = out

    def verify_waits(self):
        tr = self.trace()
        vm = []; lg = []
        for idx in tr:
            I = self.ins[idx]
            if I.kind == 'label':
                continue
            if I.kind == 'wait':
                m = re.search(r'vmcnt\((\d+)\)', I.text)
                if m:
                    n = int(m.group(1)); vm = vm[len(vm) - n:] if n > 0 and n < len(vm) else (vm if n >= len(vm) else [])
                m = re.search(r'lgkmcnt\((\d+)\)', I.text)
                if m:
                    n = int(m.group(1)); lg = lg[len(lg) - n:] if n > 0 and n < len(lg) else (lg if n >= len(lg) else [])
                continue
            touched = set(I.rd) | set(I.wr)
            for o in vm:
                if (o['dst'] & touched) or (I.need and o['tag'] in I.need):
                    raise RuntimeError('uncovered vmem dependency at: ' + I.text)
            for o in lg:
                if o['dst'] & touched:
                    raise RuntimeError('uncovered lds dependency at: ' + I.text)
            if I.kind == 'barrier' and any(o['wr'] for o in lg):
                raise RuntimeError('lds write outstanding at barrier')
            if I.kind in ('vm_ld', 'vm_st', 'vm_dma'):
                vm.append(dict(dst=set(I.wr), tag=I.tag))
            elif I.kind == 'ds_rd':
                lg.append(dict(dst=set(I.wr), wr=False))
            elif I.kind == 'ds_wr':
                lg.append(dict(dst=set(), wr=True))
            if len(vm) > 63:
                raise RuntimeError('too many outstanding vmem ops')
            if len(lg) > 15:
                raise RuntimeError('too many outstanding lds ops (%d) at %s' % (len(lg), I.text))

    def pass_hazards(self):
        for it in range(50):
            tr = self.trace()
            pos = 0
            lastw = {}
            lastsrcc = {}
            laststore = {}
            changed = False
            add = {}
            for idx in tr:
                I = self.ins[idx]
                if I.kind == 'label':
                    continue
                pos += I.pre_nop
                need = 0

                def req(p0, ws):
                    have = pos - p0 - 1
                    return max(0, ws - have)
                k = I.kind
                isvalu = k in ('valu', 'trans', 'permlane', 'readlane')
                for r in I.rd:
                    w = lastw.get(r)
                    if w is None:
                        continue
                    p0, wk, wi = w
                    wvalu = wk in ('valu', 'trans', 'permlane', 'readlane')
                    if r[0] in ('v', 'a'):
                        if wvalu and k == 'mfma':
                            need = max(need, req(p0, 2))
                        if wk == 'mfma':
                            if k == 'mfma':
                                if r in I.srcc and wi.wr == I.srcc:
                                    pass
                                elif r in I.srcc and not (r in (set(I.rd) - set(I.srcc))):
                                    need = max(need, req(p0, 6))
                                else:
                                    need = max(need, req(p0, 8))
                            else:
                                need = max(need, req(p0, 8))
                        if wk == 'trans' and isvalu and k != 'trans':
                            need = max(need, req(p0, 1))
                        if wk == 'trans' and k == 'trans':
                            need = max(need, req(p0, 1))
                        if wvalu and k == 'permlane':
                            need = max(need, req(p0, 2))
                        if wvalu and k == 'readlane':
                            need = max(need, req(p0, 1))
                    if r[0] in ('s', 'vcc'):
                        if wvalu:
                            if isvalu:
                                need = max(need, req(p0, 2))
                            elif k in ('vm_ld', 'vm_st', 'vm_dma'):
                                need = max(need, req(p0, 5))
                            else:
                                need = max(need, req(p0, 4))
                    if r[0] == 'm0' and wk == 'salu' and k == 'vm_dma':
                        need = max(need, req(p0, 1))
                for r in I.wr:
                    w = lastw.get(r)
                    if w is not None:
                        p0, wk, wi = w
                        if wk == 'mfma' and k != 'mfma':
                            need = max(need, req(p0, 8))
                        if wk == 'mfma' and k == 'mfma' and not (wi.wr == I.wr):
                            need = max(need, req(p0, 8))
                    if isvalu and r in lastsrcc:
                        need = max(need, req(lastsrcc[r], 3))
                    if r in laststore:
                        need = max(need, req(laststore[r], 2))
                if need > 0:
                    add[idx] = max(add.get(idx, 0), need)
                    pos += need
                for r in I.wr:
                    lastw[r] = (pos, k, I)
                if k == 'mfma':
                    for r in I.srcc:
                        lastsrcc[r] = pos
                if k == 'vm_st':
                    for r in I.srcc:
                        laststore[r] = pos
                pos += I.nstates()
            if not add:
                return
            for idx, n in add.items():
                self.ins[idx].pre_nop += n
        raise RuntimeError('hazard pass did not converge')

    def render(self):
        out = []
        for I in self.ins:
            n = I.pre_nop
            while n > 0:
                c = min(n, 16)
                out.append('    s_nop %d' % (c - 1))
                n -= c
            if I.kind == 'label':
                out.append(I.text)
            else:
                out.append('    ' + I.text + (('  ; ' + I.comment) if I.comment else ''))
        return '\n'.join(out) + '\n'

    def finalize(self):
        self.pass_waitcnt()
        self.materialize_waits()
        for _ in range(5):
            n0 = len(self.ins)
            self.pass_waitcnt_explicit()
            self.materialize_waits()
            if len(self.ins) == n0:
                break
        self.verify_waits()
        self.pass_hazards()
        return self.render()

    def pass_waitcnt_explicit(self):
        tr = self.trace()
        vm = []; lg = []
        for idx in tr:
            I = self.ins[idx]
            if I.kind == 'label':
                continue
            if I.kind == 'wait':
                m = re.search(r'vmcnt\((\d+)\)', I.text)
                if m:
                    n = int(m.group(1))
                    if n < len(vm):
                        vm = vm[len(vm) - n:] if n > 0 else []
                m = re.search(r'lgkmcnt\((\d+)\)', I.text)
                if m:
                    n = int(m.group(1))
                    if n < len(lg):
                        lg = lg[len(lg) - n:] if n > 0 else []
                continue
            touched = set(I.rd) | set(I.wr)
            need_n = None
            for p, o in enumerate(vm):
                if (o['dst'] & touched) or (I.need and o['tag'] in I.need):
                    n = len(vm) - 1 - p
                    need_n = n if need_n is None else min(need_n, n)
            if I.kind in ('vm_ld', 'vm_st', 'vm_dma') and len(vm) >= 60:
                need_n = 56 if need_n is None else min(need_n, 56)
            if need_n is not None:
                need_n = min(need_n, 63)
                I.wait_vm = need_n if I.wait_vm is None else min(I.wait_vm, need_n)
                vm = vm[len(vm) - need_n:] if need_n > 0 else []
            need_l = None
            for p, o in enumerate(lg):
                if o['dst'] & touched:
                    n = len(lg) - 1 - p
                    need_l = n if need_l is None else min(need_l, n)
            if I.kind == 'barrier' and any(o['wr'] for o in lg):
                need_l = 0
            if I.kind in ('ds_rd', 'ds_wr') and len(lg) >= 15:
                need_l = 12 if need_l is None else min(need_l, 12)
            if need_l is not None:
                need_l = min(need_l, 15)
                I.wait_lgkm = need_l if I.wait_lgkm is None else min(I.wait_lgkm, need_l)
                lg = lg[len(lg) - need_l:] if need_l > 0 else []
            if I.kind in ('vm_ld', 'vm_st', 'vm_dma'):
                vm.append(dict(dst=set(I.wr), tag=I.tag))
            elif I.kind == 'ds_rd':
                lg.append(dict(dst=set(I.wr), wr=False))
            elif I.kind == 'ds_wr':
                lg.append(dict(dst=set(), wr=True))


def interleave(mf, fill, lead=0):
    out = []
    nm = len(mf)
    nf = len(fill)
    fi = 0
    for i, m in enumerate(mf):
        out.append(m)
        tgt = (nf * (i + 1) + nm - 1) // nm if nm else nf
        while fi < min(tgt, nf):
            out.append(fill[fi]); fi += 1
    while fi < nf:
        out.append(fill[fi]); fi += 1
    return out
```

```python
import math
from asmfw import Prog

X_BYTES = 8 * 192 * 640 * 2
KV_BYTES = 8 * 32 * 512 * 192 * 2
WQ_BYTES = 640 * 6144 * 2
WS_O_BYTES = 2 * 96 * 192 * 1024
TILE = 24576
RING = 6
LDS1 = TILE * RING
LOOKAHEAD = 5
SPREAD = 5
RS = 12

V_LANE = 1
V_GKV = 4
V_GW = 216
V_XOFF = 10
V_OOFF = 13
V_BP = 222
V_KP = 14
V_VP = 16
V_WP = 20
V_KW = 24
V_VW = 26
V_MC = 30
V_L = 33
V_CM = 36
V_T = 39
V_S = [48, 96]
V_P = 144
V_A = 168
A_Q = 144

S_SLOT = 60
S_WOFF = 66
S_C = 70
S_THR = 71


def f32bits(x):
    import struct
    return struct.unpack('<I', struct.pack('<f', x))[0]


def gen_k1(name):
    p = Prog()
    e = p.emit
    e(name + ':')
    e('s_cmp_ge_u32 s2, 256')
    e('s_cbranch_scc1 L1_end')
    e('s_load_dwordx16 s[4:19], s[0:1], 0')
    e('s_load_dwordx4 s[20:23], s[0:1], 64')
    e('s_load_dwordx2 s[24:25], s[0:1], 96')
    e('s_and_b32 s67, s2, 7')
    e('s_lshr_b32 s68, s2, 3')
    e('s_lshr_b32 s52, s67, 2')
    e('s_and_b32 s67, s67, 3')
    e('s_lshl_b32 s67, s67, 2')
    e('s_lshr_b32 s69, s68, 3')
    e('s_add_u32 s67, s67, s69')
    e('s_lshl_b32 s54, s67, 1')
    e('s_and_b32 s53, s68, 7')
    e('v_lshrrev_b32 v2, 6, v0')
    e('v_and_b32 v%d, 63, v0' % V_LANE)
    e('v_readfirstlane_b32 s55, v2')
    e('s_waitcnt lgkmcnt(0)')
    e('s_cmp_eq_u32 s52, 0')
    for (dst, a, b_, sz) in ((28, 4, 14, X_BYTES), (32, 10, 20, WQ_BYTES), (36, 10, 20, WQ_BYTES),
                             (40, 6, 16, KV_BYTES), (44, 8, 18, KV_BYTES)):
        e('s_cselect_b32 s%d, s%d, s%d' % (dst, a, b_))
        e('s_cselect_b32 s%d, s%d, s%d' % (dst + 1, a + 1, b_ + 1))
        e('s_mov_b32 s%d, %d' % (dst + 2, sz))
        e('s_mov_b32 s%d, 0x00020000' % (dst + 3))
    e('s_mov_b32 s48, s24')
    e('s_mov_b32 s49, s25')
    e('s_mov_b32 s50, %d' % WS_O_BYTES)
    e('s_mov_b32 s51, 0x00020000')
    e('s_lshl_b32 s56, s53, 5')
    e('s_add_u32 s56, s56, s54')
    e('s_mul_i32 s56, s56, 196608')
    e('s_mul_i32 s57, s54, 384')
    e('s_mul_i32 s58, s53, 245760')
    e('s_mul_i32 s59, s52, 96')
    e('s_mul_i32 s67, s53, 12')
    e('s_add_u32 s59, s59, s67')
    e('s_mul_i32 s67, s55, 3')
    e('s_add_u32 s59, s59, s67')
    e('s_mul_i32 s59, s59, 192')
    e('s_mul_i32 s67, s54, 6')
    e('s_add_u32 s59, s59, s67')
    e('s_lshl_b32 s59, s59, 10')
    for k in range(RING):
        e('s_mov_b32 s%d, %d' % (S_SLOT + k, k * TILE))
    e('s_mul_i32 s%d, s55, 6144' % S_WOFF)
    cs = (192.0 ** -0.5) * math.log2(math.e)
    e('s_mov_b32 s%d, 0x%08x' % (S_C, f32bits(cs)))
    e('s_mov_b32 s%d, 0x%08x' % (S_THR, f32bits(8.0)))
    e('s_getpc_b64 s[74:75]')
    e('L1_pc:')
    e('s_add_u32 s74, s74, L1_rescale-L1_pc')
    e('s_addc_u32 s75, s75, 0')
    L = V_LANE
    e('v_lshrrev_b32 v2, 4, v%d' % L)
    e('v_and_b32 v3, 15, v%d' % L)
    for j in range(3):
        e('v_add_u32 v40, %d, v%d' % (j * 64, L))
        e('v_mul_u32_u24 v41, 2731, v40')
        e('v_lshrrev_b32 v41, 16, v41')
        e('v_mul_u32_u24 v42, 24, v41')
        e('v_sub_u32 v42, v40, v42')
        e('v_xor_b32 v43, v42, v41')
        e('v_and_b32 v43, 7, v43')
        e('v_and_b32 v44, 24, v42')
        e('v_or_b32 v43, v43, v44')
        e('v_mul_u32_u24 v45, 384, v41')
        e('v_lshl_add_u32 v45, v43, 4, v45')
        e('v_add_u32 v45, s%d, v45' % S_WOFF)
        if j:
            e('v_subrev_u32 v45, %d, v45' % (j * 1024))
        e('v_mov_b32 v%d, v45' % (V_GKV + j))
        for half in range(2):
            e('v_and_b32 v43, 2, v41')
            if half:
                e('v_or_b32 v43, 4, v43')
            e('v_xor_b32 v43, v42, v43')
            e('v_and_b32 v43, 7, v43')
            e('v_or_b32 v43, v43, v44')
            e('s_lshl_b32 s67, s55, 4')
            e('v_add_u32 v45, %d, v41' % (half * 8))
            e('v_add_u32 v45, s67, v45')
            e('v_mul_u32_u24 v45, 12288, v45')
            e('v_lshl_add_u32 v45, v43, 4, v45')
            if j:
                e('v_subrev_u32 v45, %d, v45' % (j * 1024))
            e('v_mov_b32 v%d, v45' % (V_GW + half * 3 + j))
    e('s_mul_i32 s67, s55, 48')
    e('v_lshrrev_b32 v40, 2, v%d' % L)
    e('v_add_u32 v40, s67, v40')
    e('v_mul_u32_u24 v40, 1280, v40')
    e('v_and_b32 v41, 3, v%d' % L)
    e('v_lshl_add_u32 v%d, v41, 4, v40' % V_XOFF)
    e('v_lshl_add_u32 v40, v3, 2, v2')
    e('v_lshlrev_b32 v%d, 2, v40' % V_BP)
    e('v_add_u32 v%d, %d, v%d' % (V_XOFF + 1, 16 * 1280, V_XOFF))
    e('v_add_u32 v%d, %d, v%d' % (V_XOFF + 2, 32 * 1280, V_XOFF))
    e('v_lshlrev_b32 v%d, 4, v%d' % (V_OOFF, L))
    e('v_and_b32 v40, 7, v%d' % L)
    e('v_xor_b32 v40, v40, v2')
    e('v_mul_u32_u24 v41, 384, v3')
    e('v_lshl_add_u32 v%d, v40, 4, v41' % V_KP)
    e('v_xor_b32 v%d, 64, v%d' % (V_KP + 1, V_KP))
    e('v_lshrrev_b32 v40, 2, v3')
    e('v_lshl_add_u32 v40, v2, 2, v40')
    e('v_and_b32 v41, 7, v40')
    e('v_bfe_u32 v42, v3, 1, 1')
    e('v_xor_b32 v41, v41, v42')
    e('v_mul_u32_u24 v40, 384, v40')
    e('v_and_b32 v43, 1, v3')
    e('v_lshl_add_u32 v40, v43, 3, v40')
    for j in range(4):
        e('v_xor_b32 v44, %d, v41' % (2 * j))
        e('v_lshl_add_u32 v%d, v44, 4, v40' % (V_VP + j))
    e('v_lshrrev_b32 v40, 2, v3')
    e('v_lshl_add_u32 v40, v2, 3, v40')
    e('v_bfe_u32 v41, v3, 3, 1')
    e('v_lshlrev_b32 v41, 1, v41')
    e('v_and_b32 v44, 1, v2')
    e('v_lshl_or_b32 v41, v44, 2, v41')
    e('v_xor_b32 v41, v41, v42')
    e('v_mul_u32_u24 v40, 384, v40')
    e('v_lshl_add_u32 v40, v43, 3, v40')
    for j in range(4):
        e('v_xor_b32 v44, %d, v41' % (2 * j))
        e('v_lshl_add_u32 v%d, v44, 4, v40' % (V_WP + j))

    tiles = [('W', t) for t in range(10)] + [('K', 0)]
    for c in range(7):
        tiles += [('K', c + 1), ('V', c)]
    tiles += [('V', 7)]
    NT = len(tiles)
    tindex = {t: i for i, t in enumerate(tiles)}

    def dma(ti):
        nxt = ti >= NT
        kind, idx = tiles[ti % NT]
        slot = S_SLOT + (ti % RING)
        tag = 'T%d' % (ti % NT)
        out = []
        o = lambda s, **kw: out.append((s, kw))
        o('s_add_u32 m0, s%d, s%d' % (slot, S_WOFF))
        if kind == 'W':
            srd = 36 if nxt else 32
            off = idx * 64 * 12288 + (384 if nxt else 0)
            o('s_add_u32 s67, s57, %d' % off)
            for j in range(3):
                o('buffer_load_dwordx4 v%d, s[%d:%d], s67 offen offset:%d lds' % (V_GW + j, srd, srd + 3, j * 1024), tag=tag)
            o('s_add_u32 m0, m0, 3072')
            for j in range(3):
                o('buffer_load_dwordx4 v%d, s[%d:%d], s67 offen offset:%d lds' % (V_GW + 3 + j, srd, srd + 3, j * 1024), tag=tag)
        else:
            assert not nxt
            srd = 40 if kind == 'K' else 44
            o('s_add_u32 s67, s56, %d' % (idx * TILE))
            for j in range(3):
                o('buffer_load_dwordx4 v%d, s[%d:%d], s67 offen offset:%d lds' % (V_GKV + j, srd, srd + 3, j * 1024), tag=tag)
            o('s_add_u32 m0, m0, 3072')
            o('s_add_u32 s67, s67, 3072')
            for j in range(3):
                o('buffer_load_dwordx4 v%d, s[%d:%d], s67 offen offset:%d lds' % (V_GKV + j, srd, srd + 3, j * 1024), tag=tag)
        return out

    def xloads(t):
        out = []
        for ks in range(2):
            for qb in range(3):
                r = V_S[0] + (t % 4) * 24 + (ks * 3 + qb) * 4
                out.append(('buffer_load_dwordx4 v[%d:%d], v%d, s[28:31], s58 offen offset:%d' %
                            (r, r + 3, V_XOFF + qb, (t * 2 + ks) * 64), {}))
        return out

    def xperm(t):
        out = []
        for f in range(6):
            r = V_S[0] + (t % 4) * 24 + f * 4
            for q in range(4):
                out.append(('ds_bpermute_b32 v%d, v%d, v%d' % (r + q, V_BP, r + q), {}))
        return out

    pend = []
    spread = [False]

    def enter_tile(ti):
        kind, idx = tiles[ti % NT]
        slot = S_SLOT + (ti % RING)
        out = [('s_barrier', dict(need=['T%d' % (ti % NT)]))]
        if kind == 'K':
            for j in range(2):
                out.append(('v_add_u32 v%d, s%d, v%d' % (V_KW + j, slot, V_KP + j), {}))
        else:
            src = V_VP if kind == 'V' else V_WP
            for j in range(4):
                out.append(('v_add_u32 v%d, s%d, v%d' % (V_VW + j, slot, src + j), {}))
        if spread[0]:
            grp = []
            for it in dma(ti + 4):
                grp.append(it)
                if it[0].startswith('buffer_load'):
                    pend.append(grp); grp = []
        else:
            out += dma(ti + 4)
        return out

    frags = []

    def add_frag(ti, reads, mf):
        frags.append(dict(tile=ti, reads=reads, mf=mf, fill=[], hard_before=[]))

    phase_start = {}

    def acc(db, qb):
        c = (db * 3 + qb) * 4
        return 'a[%d:%d]' % (c, c + 3)

    for t in range(10):
        ti = tindex[('W', t)]
        phase_start[('QP', t)] = len(frags)
        for ks in range(2):
            for dqb in range(12):
                off = (dqb >> 2) * 128 + ks * 12288
                b = V_VW + (dqb & 3)
                reads = [('ds_read_b64_tr_b16', 0, b, off), ('ds_read_b64_tr_b16', 2, b, off + 1536)]
                mf = []
                for qb in range(3):
                    xr = V_S[0] + (t % 4) * 24 + (ks * 3 + qb) * 4
                    src = '0' if (t == 0 and ks == 0) else acc(dqb, qb)
                    mf.append((acc(dqb, qb), 'v[%d:%d]' % (xr, xr + 3), src))
                add_frag(ti, reads, mf)

    def add_qk(c):
        ti = tindex[('K', c)]
        sb = V_S[c % 2]
        for kb in range(4):
            for ds in range(6):
                off = kb * 6144 + (ds >> 1) * 128
                reads = [('ds_read_b128', 0, V_KW + (ds & 1), off)]
                mf = []
                for qb in range(3):
                    d = sb + (kb * 3 + qb) * 4
                    q = A_Q + (ds * 3 + qb) * 4
                    dst = 'v[%d:%d]' % (d, d + 3)
                    mf.append((dst, 'a[%d:%d]' % (q, q + 3), '0' if ds == 0 else dst))
                add_frag(ti, reads, mf)

    def add_pv(c):
        ti = tindex[('V', c)]
        for ks in range(2):
            for db in range(12):
                off = (db >> 2) * 128 + ks * 12288
                b = V_VW + (db & 3)
                reads = [('ds_read_b64_tr_b16', 0, b, off), ('ds_read_b64_tr_b16', 2, b, off + 6144)]
                mf = []
                for qb in range(3):
                    pr = V_P + (ks * 3 + qb) * 4
                    src = '0' if (c == 0 and ks == 0) else acc(db, qb)
                    mf.append((acc(db, qb), 'v[%d:%d]' % (pr, pr + 3), src))
                add_frag(ti, reads, mf)

    phase_start[('A', -1)] = len(frags)
    add_qk(0)
    for c in range(8):
        phase_start[('A', c)] = len(frags)
        if c < 7:
            add_qk(c + 1)
        phase_start[('B', c)] = len(frags)
        add_pv(c)
    NF = len(frags)
    assert NF % RS == 0, NF
    phase_start['END'] = NF

    def maxtree(c, dst):
        sb = V_S[c % 2]
        out = []
        for step in range(8):
            for qb in range(3):
                regs = [sb + (kb * 3 + qb) * 4 + r for kb in range(4) for r in range(4)]
                if step == 0:
                    out.append(('v_max3_f32 v%d, v%d, v%d, v%d' % (dst + qb, regs[0], regs[1], regs[2]), {}))
                elif step < 7:
                    out.append(('v_max3_f32 v%d, v%d, v%d, v%d' % (dst + qb, dst + qb, regs[2 * step + 1], regs[2 * step + 2]), {}))
                else:
                    out.append(('v_max_f32 v%d, v%d, v%d' % (dst + qb, dst + qb, regs[15]), {}))
        return out

    def xlane(op, src, tmp):
        out = []
        for sw in ('v_permlane16_swap_b32', 'v_permlane32_swap_b32'):
            for qb in range(3):
                out.append(('v_mov_b32 v%d, v%d' % (tmp + qb, src + qb), {}))
            for qb in range(3):
                out.append(('%s v%d, v%d' % (sw, src + qb, tmp + qb), {}))
            for qb in range(3):
                out.append(('%s v%d, v%d, v%d' % (op, src + qb, src + qb, tmp + qb), {}))
        return out

    def exps(c):
        sb = V_S[c % 2]
        out = []
        for kb in range(4):
            for qb in range(3):
                base = sb + (kb * 3 + qb) * 4
                for r in range(4):
                    out.append(('v_fma_f32 v%d, v%d, s%d, -v%d' % (base + r, base + r, S_C, V_MC + qb), {}))
                for r in range(4):
                    out.append(('v_exp_f32 v%d, v%d' % (base + r, base + r), {}))
            if kb >= 1:
                out += cvts(c, kb - 1)
        out += cvts(c, 3)
        return out

    def cvts(c, kb):
        sb = V_S[c % 2]
        out = []
        for qb in range(3):
            base = sb + (kb * 3 + qb) * 4
            pr = V_P + ((kb >> 1) * 3 + qb) * 4 + (kb & 1) * 2
            out.append(('v_cvt_pk_bf16_f32 v%d, v%d, v%d' % (pr, base, base + 1), {}))
            out.append(('v_cvt_pk_bf16_f32 v%d, v%d, v%d' % (pr + 1, base + 2, base + 3), {}))
        return out

    def sums(c):
        sb = V_S[c % 2]
        out = []
        for kb in range(4):
            for r in range(4):
                for qb in range(3):
                    reg = sb + (kb * 3 + qb) * 4 + r
                    if c == 0 and kb == 0 and r == 0:
                        out.append(('v_mov_b32 v%d, v%d' % (V_L + qb, reg), {}))
                    else:
                        out.append(('v_add_f32 v%d, v%d, v%d' % (V_L + qb, V_L + qb, reg), {}))
        return out

    def check():
        out = []
        for qb in range(3):
            out.append(('v_fma_f32 v%d, v%d, s%d, -v%d' % (V_T + qb, V_CM + qb, S_C, V_MC + qb), {}))
        out.append(('v_max3_f32 v%d, v%d, v%d, v%d' % (V_T, V_T, V_T + 1, V_T + 2), {}))
        out.append(('v_cmp_lt_f32 s[78:79], s%d, v%d' % (S_THR, V_T), {}))
        return out

    phase_fill = {}
    hard = {}

    qconv = []
    for j in range(6):
        for qb in range(3):
            t0 = V_S[1] + ((j * 3 + qb) % 4) * 12
            for h2 in range(2):
                c0 = ((2 * j + h2) * 3 + qb) * 4
                for r in range(4):
                    qconv.append(('v_accvgpr_read_b32 v%d, a%d' % (t0 + h2 * 4 + r, c0 + r), {}))
            X = t0 + 8
            qconv.append(('v_cvt_pk_bf16_f32 v%d, v%d, v%d' % (X, t0, t0 + 1), {}))
            qconv.append(('v_cvt_pk_bf16_f32 v%d, v%d, v%d' % (X + 1, t0 + 2, t0 + 3), {}))
            qconv.append(('v_cvt_pk_bf16_f32 v%d, v%d, v%d' % (X + 2, t0 + 4, t0 + 5), {}))
            qconv.append(('v_cvt_pk_bf16_f32 v%d, v%d, v%d' % (X + 3, t0 + 6, t0 + 7), {}))
            qconv.append(('v_permlane32_swap_b32 v%d, v%d' % (X, X + 2), {}))
            qconv.append(('v_permlane32_swap_b32 v%d, v%d' % (X + 1, X + 3), {}))
            qconv.append(('v_permlane16_swap_b32 v%d, v%d' % (X, X + 2), {}))
            qconv.append(('v_permlane16_swap_b32 v%d, v%d' % (X + 1, X + 3), {}))
            q = A_Q + (j * 3 + qb) * 4
            for r in range(4):
                qconv.append(('v_accvgpr_write_b32 a%d, v%d' % (q + r, X + r), {}))
    hard[phase_start[('A', -1)]] = qconv

    for t in range(9):
        phase_fill[('QP', t)] = xperm(t + 1)
    hard[phase_start[('QP', 0)]] = xperm(0)
    for c in range(8):
        fa = []
        if c == 0:
            fa += maxtree(0, V_CM) + xlane('v_max_f32', V_CM, V_T)
            for qb in range(3):
                fa.append(('v_mul_f32 v%d, s%d, v%d' % (V_MC + qb, S_C, V_CM + qb), {}))
        fa += exps(c)
        phase_fill[('A', c)] = fa
        fb = sums(c)
        if c < 7:
            fb = fb[:24] + maxtree(c + 1, V_CM) + fb[24:] + check()
        phase_fill[('B', c)] = fb

    def emit_list(lst):
        for (s, kw) in lst:
            e(s, **kw)

    def frag_reads(fi, nxt_iter=False):
        f = frags[fi % NF]
        out = []
        ti = f['tile'] + (NT if fi >= NF else 0)
        if fi % NF == 0 or frags[(fi % NF) - 1]['tile'] != f['tile']:
            out += enter_tile(ti)
        r = V_A + (fi % RS) * 4
        for (op, ro, base, off) in f['reads']:
            if op == 'ds_read_b128':
                out.append(('ds_read_b128 v[%d:%d], v%d offset:%d' % (r, r + 3, base, off), {}))
            else:
                out.append(('%s v[%d:%d], v%d offset:%d' % (op, r + ro, r + ro + 1, base, off), {}))
        return out

    for ti in range(4):
        emit_list(dma(ti))
    for t in range(4):
        emit_list(xloads(t))
    for fi in range(LOOKAHEAD):
        emit_list(frag_reads(fi))
    spread[0] = True
    e('s_mov_b32 s76, 0')
    e('L1_head:')
    p.loop_begin()
    e('s_cmp_eq_u32 s76, 1')
    e('s_cselect_b32 s38, 0, %d' % WQ_BYTES)

    order = [('QP', t) for t in range(10)] + [('A', -1)]
    for c in range(8):
        order += [('A', c), ('B', c)]
    gcount = [0]
    for pi, ph in enumerate(order):
        a = phase_start[ph]
        b_ = phase_start[order[pi + 1]] if pi + 1 < len(order) else NF
        fill = phase_fill.get(ph, [])
        if a in hard:
            emit_list(hard[a])
        if ph[0] == 'QP' and 1 <= ph[1] and ph[1] + 3 < 10:
            for it in xloads(ph[1] + 3):
                pend.append([it])
        nm = (b_ - a) * 3
        fi_done = 0
        mcount = 0
        for fi in range(a, b_):
            emit_list(frag_reads(fi + LOOKAHEAD))
            r = V_A + (fi % RS) * 4
            for (dst, bsrc, csrc) in frags[fi]['mf']:
                e('v_mfma_f32_16x16x32_bf16 %s, v[%d:%d], %s, %s' % (dst, r, r + 3, bsrc, csrc))
                mcount += 1
                gcount[0] += 1
                if pend and gcount[0] % SPREAD == 0:
                    emit_list(pend.pop(0))
                tgt = (len(fill) * mcount + nm - 1) // nm
                while fi_done < tgt:
                    s, kw = fill[fi_done]
                    e(s, **kw)
                    fi_done += 1
        while fi_done < len(fill):
            s, kw = fill[fi_done]
            e(s, **kw)
            fi_done += 1
        if ph[0] == 'B' and ph[1] < 7:
            e('s_cmp_lg_u64 s[78:79], 0')
            e('s_cbranch_scc0 L1_skip%d' % ph[1])
            e('s_swappc_b64 s[72:73], s[74:75]')
            e('L1_skip%d:' % ph[1])

    while pend:
        emit_list(pend.pop(0))
    for t in range(4):
        emit_list(xloads(t))
    emit_list(xlane('v_add_f32', V_L, V_T))
    for qb in range(3):
        e('v_rcp_f32 v%d, v%d' % (V_T + 3 + qb, V_L + qb))
    TMP = 144
    n = 0
    for j in range(6):
        for qb in range(3):
            t0 = TMP + (n % 2) * 12
            n += 1
            for h2 in range(2):
                c0 = ((2 * j + h2) * 3 + qb) * 4
                for r in range(4):
                    e('v_accvgpr_read_b32 v%d, a%d' % (t0 + h2 * 4 + r, c0 + r))
            for r in range(8):
                e('v_mul_f32 v%d, v%d, v%d' % (t0 + r, t0 + r, V_T + 3 + qb))
            X = t0 + 8
            e('v_cvt_pk_bf16_f32 v%d, v%d, v%d' % (X, t0, t0 + 1))
            e('v_cvt_pk_bf16_f32 v%d, v%d, v%d' % (X + 1, t0 + 2, t0 + 3))
            e('v_cvt_pk_bf16_f32 v%d, v%d, v%d' % (X + 2, t0 + 4, t0 + 5))
            e('v_cvt_pk_bf16_f32 v%d, v%d, v%d' % (X + 3, t0 + 6, t0 + 7))
            e('v_permlane32_swap_b32 v%d, v%d' % (X, X + 2))
            e('v_permlane32_swap_b32 v%d, v%d' % (X + 1, X + 3))
            e('v_permlane16_swap_b32 v%d, v%d' % (X, X + 2))
            e('v_permlane16_swap_b32 v%d, v%d' % (X + 1, X + 3))
            e('s_add_u32 s67, s59, %d' % (qb * 196608 + j * 1024))
            e('buffer_store_dwordx4 v[%d:%d], v%d, s[48:51], s67 offen' % (X, X + 3, V_OOFF))
    e('s_add_u32 s56, s56, 196608')
    e('s_add_u32 s57, s57, 384')
    e('s_add_u32 s59, s59, 6144')
    rot = NT % RING
    tmp = [80 + k for k in range(RING)]
    for k in range(RING):
        e('s_mov_b32 s%d, s%d' % (tmp[k], S_SLOT + (k + rot) % RING))
    for k in range(RING):
        e('s_mov_b32 s%d, s%d' % (S_SLOT + k, tmp[k]))
    e('s_add_u32 s76, s76, 1')
    e('s_cmp_lt_u32 s76, 2')
    e('s_cbranch_scc1 L1_head')
    p.loop_end(2)
    e('s_waitcnt vmcnt(0) lgkmcnt(0)')
    e('L1_end:')
    e('s_endpgm')
    body = p.finalize()

    r = []
    o = r.append
    o('L1_rescale:')
    o('    s_nop 15')
    for sw in ('v_permlane16_swap_b32', 'v_permlane32_swap_b32'):
        for qb in range(3):
            o('    v_mov_b32 v%d, v%d' % (V_T + qb, V_CM + qb))
        o('    s_nop 1')
        for qb in range(3):
            o('    %s v%d, v%d' % (sw, V_CM + qb, V_T + qb))
        o('    s_nop 1')
        for qb in range(3):
            o('    v_max_f32 v%d, v%d, v%d' % (V_CM + qb, V_CM + qb, V_T + qb))
        o('    s_nop 1')
    for qb in range(3):
        o('    v_mul_f32 v%d, s%d, v%d' % (V_T + qb, S_C, V_CM + qb))
    for qb in range(3):
        o('    v_max_f32 v%d, v%d, v%d' % (V_T + qb, V_T + qb, V_MC + qb))
    for qb in range(3):
        o('    v_sub_f32 v%d, v%d, v%d' % (V_T + 3 + qb, V_MC + qb, V_T + qb))
    for qb in range(3):
        o('    v_exp_f32 v%d, v%d' % (V_T + 3 + qb, V_T + 3 + qb))
    for qb in range(3):
        o('    v_mov_b32 v%d, v%d' % (V_MC + qb, V_T + qb))
    o('    s_nop 1')
    for qb in range(3):
        o('    v_mul_f32 v%d, v%d, v%d' % (V_L + qb, V_L + qb, V_T + 3 + qb))
    for db in range(12):
        for qb in range(3):
            c0 = (db * 3 + qb) * 4
            for rr in range(4):
                o('    v_accvgpr_read_b32 v%d, a%d' % (V_T + 6 + (rr & 1), c0 + rr))
                o('    v_mul_f32 v%d, v%d, v%d' % (V_T + 6 + (rr & 1), V_T + 6 + (rr & 1), V_T + 3 + qb))
                o('    v_accvgpr_write_b32 a%d, v%d' % (c0 + rr, V_T + 6 + (rr & 1)))
    o('    s_nop 3')
    o('    s_setpc_b64 s[72:73]')
    return body + '\n'.join(r) + '\n'


K1_DESC = '''.amdhsa_kernel {name}
  .amdhsa_next_free_vgpr 512
  .amdhsa_next_free_sgpr 96
  .amdhsa_accum_offset 256
  .amdhsa_group_segment_fixed_size 0
  .amdhsa_kernarg_size 104
  .amdhsa_user_sgpr_count 2
  .amdhsa_user_sgpr_kernarg_segment_ptr 1
  .amdhsa_system_sgpr_workgroup_id_x 1
.end_amdhsa_kernel
'''

if __name__ == '__main__':
    print(gen_k1('k1_kernel'))
```

```python
from asmfw import Prog

WS_O_BYTES = 2 * 96 * 192 * 1024
WO_BYTES = 6144 * 640 * 2
OUT_BYTES = 8 * 192 * 1280 * 2
PBASE = 64 * 1024 * 1024
PART_BYTES = 4 * 192 * 40 * 1024
STAGE = 49152
LDS2B = 3 * STAGE


def gen_k2b(name):
    p = Prog()
    e = p.emit
    e(name + ':')
    e('s_cmp_ge_u32 s2, 256')
    e('s_cbranch_scc1 L2_end')
    e('s_load_dwordx2 s[4:5], s[0:1], 32')
    e('s_load_dwordx2 s[6:7], s[0:1], 72')
    e('s_load_dwordx2 s[22:23], s[0:1], 96')
    e('s_and_b32 s24, s2, 7')
    e('s_lshr_b32 s25, s2, 3')
    e('s_lshr_b32 s26, s24, 2')
    e('s_and_b32 s27, s24, 3')
    e('s_lshr_b32 s28, s25, 2')
    e('s_and_b32 s29, s25, 3')
    e('v_lshrrev_b32 v1, 6, v0')
    e('v_and_b32 v2, 63, v0')
    e('v_readfirstlane_b32 s30, v1')
    e('s_waitcnt lgkmcnt(0)')
    e('s_cmp_eq_u32 s26, 0')
    e('s_cselect_b32 s8, s4, s6')
    e('s_cselect_b32 s9, s5, s7')
    e('s_mov_b32 s10, %d' % WO_BYTES)
    e('s_mov_b32 s11, 0x00020000')
    e('s_mov_b32 s12, s22')
    e('s_mov_b32 s13, s23')
    e('s_mov_b32 s14, %d' % WS_O_BYTES)
    e('s_mov_b32 s15, 0x00020000')
    e('s_mov_b32 s16, s22')
    e('s_mov_b32 s17, s23')
    e('s_mov_b32 s18, %d' % (PBASE + PART_BYTES))
    e('s_mov_b32 s19, 0x00020000')
    e('s_lshr_b32 s31, s30, 2')
    e('s_lshr_b32 s32, s30, 1')
    e('s_and_b32 s32, s32, 1')
    e('s_and_b32 s33, s30, 1')
    e('s_mul_i32 s34, s26, 96')
    e('s_mul_i32 s35, s28, 12')
    e('s_add_u32 s34, s34, s35')
    e('s_and_b32 s35, s30, 3')
    e('s_mul_i32 s35, s35, 3')
    e('s_add_u32 s34, s34, s35')
    e('s_mul_i32 s34, s34, 192')
    e('s_mul_i32 s35, s27, 48')
    e('s_add_u32 s34, s34, s35')
    e('s_add_u32 s34, s34, s31')
    e('s_lshl_b32 s34, s34, 10')
    e('s_mul_i32 s36, s30, 3072')
    e('s_mul_i32 s35, s27, %d' % (1536 * 1280))
    e('s_mul_i32 s37, s29, 320')
    e('s_add_u32 s35, s35, s37')
    e('v_lshlrev_b32 v8, 4, v2')
    e('s_mul_i32 s37, s30, 192')
    for j in range(3):
        e('v_add_u32 v3, %d, v2' % (j * 64))
        e('v_add_u32 v3, s37, v3')
        e('v_mul_u32_u24 v4, 3277, v3')
        e('v_lshrrev_b32 v4, 16, v4')
        e('v_mul_u32_u24 v5, 20, v4')
        e('v_sub_u32 v5, v3, v5')
        e('v_bfe_u32 v6, v4, 3, 1')
        e('v_lshlrev_b32 v6, 1, v6')
        e('v_xor_b32 v5, v5, v6')
        e('v_mul_u32_u24 v6, 1280, v4')
        e('v_lshl_add_u32 v6, v5, 4, v6')
        e('v_cmp_gt_u32 vcc, 1280, v3')
        e('v_mov_b32 v7, 0x7fffffff')
        e('v_cndmask_b32 v%d, v7, v6, vcc' % (9 + j))
    e('s_mul_i32 s37, s31, 12')
    e('s_mul_i32 s38, s32, 6')
    e('s_add_u32 s37, s37, s38')
    e('s_lshl_b32 s37, s37, 10')
    e('v_add_u32 v12, s37, v8')
    e('v_and_b32 v3, 15, v2')
    e('v_lshrrev_b32 v4, 4, v2')
    e('v_lshrrev_b32 v5, 2, v3')
    e('v_lshl_add_u32 v5, v4, 3, v5')
    e('s_lshl_b32 s37, s31, 5')
    e('v_add_u32 v5, s37, v5')
    e('v_mul_u32_u24 v5, 320, v5')
    e('v_and_b32 v6, 1, v3')
    e('v_lshl_add_u32 v5, v6, 3, v5')
    e('v_bfe_u32 v6, v3, 1, 1')
    e('v_lshl_add_u32 v5, v6, 4, v5')
    e('v_add_u32 v5, 24576, v5')
    e('v_and_b32 v6, 1, v4')
    e('s_mul_i32 s37, s33, 5')
    for nl in range(5):
        e('v_add_u32 v7, %d, v6' % 0)
        e('s_add_u32 s38, s37, %d' % nl)
        e('v_xor_b32 v7, s38, v6')
        e('v_lshl_add_u32 v%d, v7, 5, v5' % (13 + nl))
    for st in range(3):
        for q in range(6):
            e('v_add_u32 v%d, %d, v%d' % (20 + st * 6 + q, st * STAGE, 12 + q))
    BRS = [40, 84]
    ARS = [64, 108]

    def issue(st, tag):
        out = []
        for j in range(3):
            out.append([('s_add_u32 m0, s36, %d' % (st * STAGE + j * 1024), {}),
                        ('s_add_u32 s39, s34, %d' % (j * 196608), {}),
                        ('buffer_load_dwordx4 v8, s[12:15], s39 offen lds', dict(tag=tag))])
        for j in range(3):
            g = [('s_add_u32 m0, s36, %d' % (st * STAGE + 24576 + j * 1024), {}),
                 ('buffer_load_dwordx4 v%d, s[8:11], s35 offen lds' % (9 + j), dict(tag=tag))]
            if j == 2:
                g += [('s_add_u32 s34, s34, 2048', {}), ('s_add_u32 s35, s35, %d' % (64 * 1280), {})]
            out.append(g)
        return out

    def reads(s_):
        st = s_ % 3
        BR, AR = BRS[s_ % 2], ARS[s_ % 2]
        base = 20 + st * 6
        out = []
        seq = [('A', 0), ('B', 0), ('B', 1), ('B', 2), ('A', 1), ('B', 3), ('B', 4), ('B', 5), ('A', 2), ('A', 3), ('A', 4)]
        for k, j in seq:
            if k == 'B':
                out.append([('ds_read_b128 v[%d:%d], v%d offset:%d' % (BR + j * 4, BR + j * 4 + 3, base, j * 1024), {})])
            else:
                out.append([('ds_read_b64_tr_b16 v[%d:%d], v%d' % (AR + j * 4, AR + j * 4 + 1, base + 1 + j), {}),
                            ('ds_read_b64_tr_b16 v[%d:%d], v%d offset:1280' % (AR + j * 4 + 2, AR + j * 4 + 3, base + 1 + j), {})])
        return out

    def emit_groups(gs):
        for g in gs:
            for (t, kw) in g:
                e(t, **kw)

    NS = 24
    emit_groups(issue(0, 't0'))
    emit_groups(issue(1, 't1'))
    emit_groups(issue(2, 't2'))
    e('s_barrier', need=['t0'])
    emit_groups(reads(0))
    for s_ in range(NS):
        BR, AR = BRS[s_ % 2], ARS[s_ % 2]
        fill = []
        if s_ + 1 < NS:
            e('s_waitcnt lgkmcnt(0)')
            e('s_barrier', need=['t%d' % ((s_ + 1) % 3)])
            rd = reads(s_ + 1)
            dm = issue(s_ % 3, 't%d' % (s_ % 3)) if s_ + 3 < NS else []
            while rd or dm:
                if rd: fill.append(rd.pop(0))
                if rd: fill.append(rd.pop(0))
                if dm: fill.append(dm.pop(0))
        n = 0
        for nl in range(5):
            for j in range(6):
                c = (nl * 6 + j) * 4
                src = '0' if s_ == 0 else 'a[%d:%d]' % (c, c + 3)
                e('v_mfma_f32_16x16x32_bf16 a[%d:%d], v[%d:%d], v[%d:%d], %s' %
                  (c, c + 3, AR + nl * 4, AR + nl * 4 + 3, BR + j * 4, BR + j * 4 + 3, src))
                n += 1
                if fill and n >= 1:
                    emit_groups([fill.pop(0)])
        emit_groups(fill)

    e('s_waitcnt vmcnt(0) lgkmcnt(0)')
    e('s_barrier')
    e('s_and_b32 s37, s30, 3')
    e('s_mul_i32 s37, s37, 30720')
    e('v_add_u32 v13, s37, v8')
    e('s_cmp_eq_u32 s31, 0')
    e('s_cbranch_scc1 L2_k0')
    for t in range(30):
        r = 40 + (t % 8) * 4
        for q in range(4):
            e('v_accvgpr_read_b32 v%d, a%d' % (r + q, t * 4 + q))
        e('ds_write_b128 v13, v[%d:%d] offset:%d' % (r, r + 3, t * 1024))
    e('s_waitcnt lgkmcnt(0)')
    e('s_barrier')
    e('s_branch L2_end')
    e('L2_k0:')
    e('s_barrier')
    e('s_mul_i32 s37, s27, 192')
    e('s_mul_i32 s38, s26, 96')
    e('s_add_u32 s37, s37, s38')
    e('s_mul_i32 s38, s28, 12')
    e('s_add_u32 s37, s37, s38')
    e('s_mul_i32 s38, s32, 6')
    e('s_add_u32 s37, s37, s38')
    e('s_mul_i32 s37, s37, 40')
    e('s_mul_i32 s38, s29, 10')
    e('s_add_u32 s37, s37, s38')
    e('s_mul_i32 s38, s33, 5')
    e('s_add_u32 s37, s37, s38')
    e('s_lshl_b32 s37, s37, 10')
    e('s_add_u32 s37, s37, %d' % PBASE)
    for t in range(30):
        nl, j = t // 6, t % 6
        r = 40 + (t % 6) * 8
        e('ds_read_b128 v[%d:%d], v13 offset:%d' % (r, r + 3, t * 1024))
        for q in range(4):
            e('v_accvgpr_read_b32 v%d, a%d' % (r + 4 + q, t * 4 + q))
        for q in range(4):
            e('v_add_f32 v%d, v%d, v%d' % (r + q, r + q, r + 4 + q))
        e('s_add_u32 s38, s37, %d' % ((j * 40 + nl) * 1024))
        e('buffer_store_dwordx4 v[%d:%d], v8, s[16:19], s38 offen' % (r, r + 3))
    e('s_waitcnt vmcnt(0)')
    e('L2_end:')
    e('s_endpgm')
    return p.finalize()


K2B_DESC = '''.amdhsa_kernel {name}
  .amdhsa_next_free_vgpr 248
  .amdhsa_next_free_sgpr 64
  .amdhsa_accum_offset 128
  .amdhsa_group_segment_fixed_size 0
  .amdhsa_kernarg_size 104
  .amdhsa_user_sgpr_count 2
  .amdhsa_user_sgpr_kernarg_segment_ptr 1
  .amdhsa_system_sgpr_workgroup_id_x 1
.end_amdhsa_kernel
'''

K3_GRID = 960


def gen_k3(name):
    p = Prog()
    e = p.emit
    e(name + ':')
    e('s_cmp_ge_u32 s2, %d' % K3_GRID)
    e('s_cbranch_scc1 L3_end')
    e('s_load_dwordx2 s[20:21], s[0:1], 80')
    e('s_load_dwordx2 s[22:23], s[0:1], 96')
    e('v_lshrrev_b32 v1, 6, v0')
    e('v_and_b32 v2, 63, v0')
    e('v_readfirstlane_b32 s30, v1')
    e('s_waitcnt lgkmcnt(0)')
    e('s_mov_b32 s12, s22')
    e('s_mov_b32 s13, s23')
    e('s_mov_b32 s14, %d' % (PBASE + PART_BYTES))
    e('s_mov_b32 s15, 0x00020000')
    e('s_mov_b32 s16, s20')
    e('s_mov_b32 s17, s21')
    e('s_mov_b32 s18, %d' % OUT_BYTES)
    e('s_mov_b32 s19, 0x00020000')
    e('s_lshl_b32 s31, s2, 2')
    e('s_add_u32 s31, s31, s30')
    e('s_lshl_b32 s31, s31, 1')
    e('v_lshlrev_b32 v8, 4, v2')
    e('s_lshl_b32 s32, s31, 10')
    e('s_add_u32 s32, s32, %d' % PBASE)
    for sp in range(4):
        e('s_add_u32 s33, s32, %d' % (sp * 192 * 40 * 1024))
        for t in range(2):
            r = 16 + (sp * 2 + t) * 4
            e('buffer_load_dwordx4 v[%d:%d], v8, s[12:15], s33 offen offset:%d' % (r, r + 3, t * 1024))
    e('s_mul_i32 s34, s31, 52429')
    e('s_lshr_b32 s34, s34, 21')
    e('s_mul_i32 s35, s34, 40')
    e('s_sub_u32 s35, s31, s35')
    e('s_cmp_ge_u32 s34, 96')
    e('s_cselect_b32 s36, 1, 0')
    e('s_mul_i32 s37, s36, 96')
    e('s_sub_u32 s34, s34, s37')
    e('s_mul_i32 s34, s34, %d' % (16 * 1280 * 2))
    e('s_mul_i32 s36, s36, 1280')
    e('s_add_u32 s34, s34, s36')
    e('s_lshl_b32 s35, s35, 5')
    e('s_add_u32 s34, s34, s35')
    e('v_and_b32 v3, 15, v2')
    e('v_lshrrev_b32 v4, 4, v2')
    e('v_mul_u32_u24 v9, 2560, v3')
    e('v_lshl_add_u32 v9, v4, 3, v9')
    for t in range(2):
        r0 = 16 + t * 4
        for sp in range(1, 4):
            r = 16 + (sp * 2 + t) * 4
            for q in range(4):
                e('v_add_f32 v%d, v%d, v%d' % (r0 + q, r0 + q, r + q))
        e('v_cvt_pk_bf16_f32 v%d, v%d, v%d' % (48 + t * 2, r0, r0 + 1))
        e('v_cvt_pk_bf16_f32 v%d, v%d, v%d' % (49 + t * 2, r0 + 2, r0 + 3))
        e('buffer_store_dwordx2 v[%d:%d], v9, s[16:19], s34 offen offset:%d' % (48 + t * 2, 49 + t * 2, t * 32))
    e('s_waitcnt vmcnt(0)')
    e('L3_end:')
    e('s_endpgm')
    return p.finalize()


K3_DESC = '''.amdhsa_kernel {name}
  .amdhsa_next_free_vgpr 56
  .amdhsa_next_free_sgpr 48
  .amdhsa_accum_offset 56
  .amdhsa_group_segment_fixed_size 0
  .amdhsa_kernarg_size 104
  .amdhsa_user_sgpr_count 2
  .amdhsa_user_sgpr_kernarg_segment_ptr 1
  .amdhsa_system_sgpr_workgroup_id_x 1
.end_amdhsa_kernel
'''
```

```python
import sys
from gen_k2 import gen_k2, K2_DESC, LDS2
from gen_k2b import gen_k2b, K2B_DESC, LDS2B, gen_k3, K3_DESC, K3_GRID
from gen_k1 import gen_k1, K1_DESC, LDS1
HEADER = open('concat_heads__gqa_block_cached__gqa_block_cached__near_ridge.s.ref').read().split('; Override launch')[0]
def build(parts):
    s = HEADER
    for n, l, b, d in parts:
        s += l + '\n'
    s += '.amdgcn_target "amdgcn-amd-amdhsa--gfx950"\n.text\n'
    for n, l, b, d in parts:
        s += '.globl %s\n.p2align 8\n.type %s,@function\n' % (n, n)
        s += b
    s += '.section .rodata,"a"\n'
    for n, l, b, d in parts:
        s += '.p2align 6\n' + d.format(name=n)
    return s
if __name__ == '__main__':
    p1 = ('attn_kernel', '; @launch kernel=attn_kernel grid=(256,1,1) block=(256,1,1) lds=%d' % LDS1, gen_k1('attn_kernel'), K1_DESC)
    p2 = ('oproj_kernel', '; @launch kernel=oproj_kernel grid=(256,1,1) block=(512,1,1) lds=%d' % LDS2, gen_k2('oproj_kernel'), K2_DESC)
    p2 = ('oproj_kernel', '; @launch kernel=oproj_kernel grid=(256,1,1) block=(512,1,1) lds=%d' % LDS2B, gen_k2b('oproj_kernel'), K2B_DESC)
    p3 = ('ored_kernel', '; @launch kernel=ored_kernel grid=(%d,1,1) block=(256,1,1) lds=0' % K3_GRID, gen_k3('ored_kernel'), K3_DESC)
    s = build([p1, p2, p3])
    open('full.s', 'w').write(s)
    open('concat_heads__gqa_block_cached__gqa_block_cached__near_ridge.s', 'w').write(s)
```

```python
import math
from asmfw import Prog

X_BYTES = 8 * 192 * 640 * 2
KV_BYTES = 8 * 32 * 512 * 192 * 2
WQ_BYTES = 640 * 6144 * 2
WS_O_BYTES = 2 * 96 * 192 * 1024
TILE = 24576
RING = 6
LDS1 = TILE * RING
LOOKAHEAD = 5
SPREAD = 5
RS = 12

V_LANE = 1
V_GKV = 4
V_GW = 216
V_XOFF = 10
V_OOFF = 13
V_BP = 222
V_TOUCH = 223
V_DUMMY = 224
TOUCH = False
V_KP = 14
V_VP = 16
V_WP = 20
V_KW = 24
V_VW = 26
V_MC = 30
V_L = 33
V_CM = 36
V_T = 39
V_S = [48, 96]
V_P = 144
V_A = 168
A_Q = 144

S_SLOT = 60
S_WOFF = 66
S_C = 70
S_THR = 71


def f32bits(x):
    import struct
    return struct.unpack('<I', struct.pack('<f', x))[0]


def gen_k1(name):
    p = Prog()
    e = p.emit
    e(name + ':')
    e('s_cmp_ge_u32 s2, 256')
    e('s_cbranch_scc1 L1_end')
    e('s_load_dwordx16 s[4:19], s[0:1], 0')
    e('s_load_dwordx4 s[20:23], s[0:1], 64')
    e('s_load_dwordx2 s[24:25], s[0:1], 96')
    e('s_and_b32 s67, s2, 7')
    e('s_lshr_b32 s68, s2, 3')
    e('s_lshr_b32 s52, s67, 2')
    e('s_and_b32 s67, s67, 3')
    e('s_lshl_b32 s67, s67, 2')
    e('s_lshr_b32 s69, s68, 3')
    e('s_add_u32 s67, s67, s69')
    e('s_lshl_b32 s54, s67, 1')
    e('s_and_b32 s53, s68, 7')
    e('v_lshrrev_b32 v2, 6, v0')
    e('v_and_b32 v%d, 63, v0' % V_LANE)
    e('v_readfirstlane_b32 s55, v2')
    e('s_waitcnt lgkmcnt(0)')
    e('s_cmp_eq_u32 s52, 0')
    for (dst, a, b_, sz) in ((28, 4, 14, X_BYTES), (32, 10, 20, WQ_BYTES), (36, 10, 20, WQ_BYTES),
                             (40, 6, 16, KV_BYTES), (44, 8, 18, KV_BYTES)):
        e('s_cselect_b32 s%d, s%d, s%d' % (dst, a, b_))
        e('s_cselect_b32 s%d, s%d, s%d' % (dst + 1, a + 1, b_ + 1))
        e('s_mov_b32 s%d, %d' % (dst + 2, sz))
        e('s_mov_b32 s%d, 0x00020000' % (dst + 3))
    e('s_mov_b32 s48, s24')
    e('s_mov_b32 s49, s25')
    e('s_mov_b32 s50, %d' % WS_O_BYTES)
    e('s_mov_b32 s51, 0x00020000')
    e('s_lshl_b32 s56, s53, 5')
    e('s_add_u32 s56, s56, s54')
    e('s_mul_i32 s56, s56, 196608')
    e('s_mul_i32 s57, s54, 384')
    e('s_mul_i32 s58, s53, 245760')
    e('s_mul_i32 s59, s52, 96')
    e('s_mul_i32 s67, s53, 12')
    e('s_add_u32 s59, s59, s67')
    e('s_mul_i32 s67, s55, 3')
    e('s_add_u32 s59, s59, s67')
    e('s_mul_i32 s59, s59, 192')
    e('s_mul_i32 s67, s54, 6')
    e('s_add_u32 s59, s59, s67')
    e('s_lshl_b32 s59, s59, 10')
    for k in range(RING):
        e('s_mov_b32 s%d, %d' % (S_SLOT + k, k * TILE))
    e('s_mul_i32 s%d, s55, 6144' % S_WOFF)
    cs = (192.0 ** -0.5) * math.log2(math.e)
    e('s_mov_b32 s%d, 0x%08x' % (S_C, f32bits(cs)))
    e('s_mov_b32 s%d, 0x%08x' % (S_THR, f32bits(8.0)))
    e('s_getpc_b64 s[74:75]')
    e('L1_pc:')
    e('s_add_u32 s74, s74, L1_rescale-L1_pc')
    e('s_addc_u32 s75, s75, 0')
    L = V_LANE
    e('v_lshrrev_b32 v2, 4, v%d' % L)
    e('v_and_b32 v3, 15, v%d' % L)
    for j in range(3):
        e('v_add_u32 v40, %d, v%d' % (j * 64, L))
        e('v_mul_u32_u24 v41, 2731, v40')
        e('v_lshrrev_b32 v41, 16, v41')
        e('v_mul_u32_u24 v42, 24, v41')
        e('v_sub_u32 v42, v40, v42')
        e('v_xor_b32 v43, v42, v41')
        e('v_and_b32 v43, 7, v43')
        e('v_and_b32 v44, 24, v42')
        e('v_or_b32 v43, v43, v44')
        e('v_mul_u32_u24 v45, 384, v41')
        e('v_lshl_add_u32 v45, v43, 4, v45')
        e('v_add_u32 v45, s%d, v45' % S_WOFF)
        if j:
            e('v_subrev_u32 v45, %d, v45' % (j * 1024))
        e('v_mov_b32 v%d, v45' % (V_GKV + j))
        for half in range(2):
            e('v_and_b32 v43, 2, v41')
            if half:
                e('v_or_b32 v43, 4, v43')
            e('v_xor_b32 v43, v42, v43')
            e('v_and_b32 v43, 7, v43')
            e('v_or_b32 v43, v43, v44')
            e('s_lshl_b32 s67, s55, 4')
            e('v_add_u32 v45, %d, v41' % (half * 8))
            e('v_add_u32 v45, s67, v45')
            e('v_mul_u32_u24 v45, 12288, v45')
            e('v_lshl_add_u32 v45, v43, 4, v45')
            if j:
                e('v_subrev_u32 v45, %d, v45' % (j * 1024))
            e('v_mov_b32 v%d, v45' % (V_GW + half * 3 + j))
    e('s_mul_i32 s67, s55, 48')
    e('v_lshrrev_b32 v40, 2, v%d' % L)
    e('v_add_u32 v40, s67, v40')
    e('v_mul_u32_u24 v40, 1280, v40')
    e('v_and_b32 v41, 3, v%d' % L)
    e('v_lshl_add_u32 v%d, v41, 4, v40' % V_XOFF)
    e('v_lshl_add_u32 v40, v3, 2, v2')
    e('v_lshlrev_b32 v%d, 2, v40' % V_BP)
    e('v_add_u32 v%d, %d, v%d' % (V_XOFF + 1, 16 * 1280, V_XOFF))
    e('v_add_u32 v%d, %d, v%d' % (V_XOFF + 2, 32 * 1280, V_XOFF))
    e('v_lshlrev_b32 v%d, 4, v%d' % (V_OOFF, L))
    e('s_lshl_b32 s67, s55, 12')
    e('v_lshlrev_b32 v40, 6, v%d' % L)
    e('v_add_u32 v%d, s67, v40' % V_TOUCH)
    e('v_and_b32 v40, 7, v%d' % L)
    e('v_xor_b32 v40, v40, v2')
    e('v_mul_u32_u24 v41, 384, v3')
    e('v_lshl_add_u32 v%d, v40, 4, v41' % V_KP)
    e('v_xor_b32 v%d, 64, v%d' % (V_KP + 1, V_KP))
    e('v_lshrrev_b32 v40, 2, v3')
    e('v_lshl_add_u32 v40, v2, 2, v40')
    e('v_and_b32 v41, 7, v40')
    e('v_bfe_u32 v42, v3, 1, 1')
    e('v_xor_b32 v41, v41, v42')
    e('v_mul_u32_u24 v40, 384, v40')
    e('v_and_b32 v43, 1, v3')
    e('v_lshl_add_u32 v40, v43, 3, v40')
    for j in range(4):
        e('v_xor_b32 v44, %d, v41' % (2 * j))
        e('v_lshl_add_u32 v%d, v44, 4, v40' % (V_VP + j))
    e('v_lshrrev_b32 v40, 2, v3')
    e('v_lshl_add_u32 v40, v2, 3, v40')
    e('v_bfe_u32 v41, v3, 3, 1')
    e('v_lshlrev_b32 v41, 1, v41')
    e('v_and_b32 v44, 1, v2')
    e('v_lshl_or_b32 v41, v44, 2, v41')
    e('v_xor_b32 v41, v41, v42')
    e('v_mul_u32_u24 v40, 384, v40')
    e('v_lshl_add_u32 v40, v43, 3, v40')
    for j in range(4):
        e('v_xor_b32 v44, %d, v41' % (2 * j))
        e('v_lshl_add_u32 v%d, v44, 4, v40' % (V_WP + j))

    tiles = [('W', t) for t in range(10)] + [('K', 0)]
    for c in range(7):
        tiles += [('K', c + 1), ('V', c)]
    tiles += [('V', 7)]
    NT = len(tiles)
    tindex = {t: i for i, t in enumerate(tiles)}

    def dma(ti):
        nxt = ti >= NT
        kind, idx = tiles[ti % NT]
        slot = S_SLOT + (ti % RING)
        tag = 'T%d' % (ti % NT)
        out = []
        o = lambda s, **kw: out.append((s, kw))
        o('s_add_u32 m0, s%d, s%d' % (slot, S_WOFF))
        if kind == 'W':
            srd = 36 if nxt else 32
            off = idx * 64 * 12288 + (384 if nxt else 0)
            o('s_add_u32 s67, s57, %d' % off)
            for j in range(3):
                o('buffer_load_dwordx4 v%d, s[%d:%d], s67 offen offset:%d lds' % (V_GW + j, srd, srd + 3, j * 1024), tag=tag)
            o('s_add_u32 m0, m0, 3072')
            for j in range(3):
                o('buffer_load_dwordx4 v%d, s[%d:%d], s67 offen offset:%d lds' % (V_GW + 3 + j, srd, srd + 3, j * 1024), tag=tag)
        else:
            assert not nxt
            srd = 40 if kind == 'K' else 44
            o('s_add_u32 s67, s56, %d' % (idx * TILE))
            for j in range(3):
                o('buffer_load_dwordx4 v%d, s[%d:%d], s67 offen offset:%d lds' % (V_GKV + j, srd, srd + 3, j * 1024), tag=tag)
            o('s_add_u32 m0, m0, 3072')
            o('s_add_u32 s67, s67, 3072')
            for j in range(3):
                o('buffer_load_dwordx4 v%d, s[%d:%d], s67 offen offset:%d lds' % (V_GKV + j, srd, srd + 3, j * 1024), tag=tag)
        return out

    def xloads(t):
        out = []
        for ks in range(2):
            for qb in range(3):
                r = V_S[0] + (t % 4) * 24 + (ks * 3 + qb) * 4
                out.append(('buffer_load_dwordx4 v[%d:%d], v%d, s[28:31], s58 offen offset:%d' %
                            (r, r + 3, V_XOFF + qb, (t * 2 + ks) * 64), {}))
        return out

    def xperm(t):
        out = []
        for f in range(6):
            r = V_S[0] + (t % 4) * 24 + f * 4
            for q in range(4):
                out.append(('ds_bpermute_b32 v%d, v%d, v%d' % (r + q, V_BP, r + q), {}))
        return out

    pend = []
    spread = [False]

    def enter_tile(ti):
        kind, idx = tiles[ti % NT]
        slot = S_SLOT + (ti % RING)
        out = [('s_barrier', dict(need=['T%d' % (ti % NT)]))]
        if kind == 'K':
            for j in range(2):
                out.append(('v_add_u32 v%d, s%d, v%d' % (V_KW + j, slot, V_KP + j), {}))
        else:
            src = V_VP if kind == 'V' else V_WP
            for j in range(4):
                out.append(('v_add_u32 v%d, s%d, v%d' % (V_VW + j, slot, src + j), {}))
        if spread[0]:
            grp = []
            for it in dma(ti + 4):
                grp.append(it)
                if it[0].startswith('buffer_load'):
                    pend.append(grp); grp = []
        else:
            out += dma(ti + 4)
        return out

    frags = []

    def add_frag(ti, reads, mf):
        frags.append(dict(tile=ti, reads=reads, mf=mf, fill=[], hard_before=[]))

    phase_start = {}

    def acc(db, qb):
        c = (db * 3 + qb) * 4
        return 'a[%d:%d]' % (c, c + 3)

    for t in range(10):
        ti = tindex[('W', t)]
        phase_start[('QP', t)] = len(frags)
        for ks in range(2):
            for dqb in range(12):
                off = (dqb >> 2) * 128 + ks * 12288
                b = V_VW + (dqb & 3)
                reads = [('ds_read_b64_tr_b16', 0, b, off), ('ds_read_b64_tr_b16', 2, b, off + 1536)]
                mf = []
                for qb in range(3):
                    xr = V_S[0] + (t % 4) * 24 + (ks * 3 + qb) * 4
                    src = '0' if (t == 0 and ks == 0) else acc(dqb, qb)
                    mf.append((acc(dqb, qb), 'v[%d:%d]' % (xr, xr + 3), src))
                add_frag(ti, reads, mf)

    def add_qk(c):
        ti = tindex[('K', c)]
        sb = V_S[c % 2]
        for kb in range(4):
            for ds in range(6):
                off = kb * 6144 + (ds >> 1) * 128
                reads = [('ds_read_b128', 0, V_KW + (ds & 1), off)]
                mf = []
                for qb in range(3):
                    d = sb + (kb * 3 + qb) * 4
                    q = A_Q + (ds * 3 + qb) * 4
                    dst = 'v[%d:%d]' % (d, d + 3)
                    mf.append((dst, 'a[%d:%d]' % (q, q + 3), '0' if ds == 0 else dst))
                add_frag(ti, reads, mf)

    def add_pv(c):
        ti = tindex[('V', c)]
        for ks in range(2):
            for db in range(12):
                off = (db >> 2) * 128 + ks * 12288
                b = V_VW + (db & 3)
                reads = [('ds_read_b64_tr_b16', 0, b, off), ('ds_read_b64_tr_b16', 2, b, off + 6144)]
                mf = []
                for qb in range(3):
                    pr = V_P + (ks * 3 + qb) * 4
                    src = '0' if (c == 0 and ks == 0) else acc(db, qb)
                    mf.append((acc(db, qb), 'v[%d:%d]' % (pr, pr + 3), src))
                add_frag(ti, reads, mf)

    phase_start[('A', -1)] = len(frags)
    add_qk(0)
    for c in range(8):
        phase_start[('A', c)] = len(frags)
        if c < 7:
            add_qk(c + 1)
        phase_start[('B', c)] = len(frags)
        add_pv(c)
    NF = len(frags)
    assert NF % RS == 0, NF
    phase_start['END'] = NF

    def maxtree(c, dst):
        sb = V_S[c % 2]
        out = []
        for step in range(8):
            for qb in range(3):
                regs = [sb + (kb * 3 + qb) * 4 + r for kb in range(4) for r in range(4)]
                if step == 0:
                    out.append(('v_max3_f32 v%d, v%d, v%d, v%d' % (dst + qb, regs[0], regs[1], regs[2]), {}))
                elif step < 7:
                    out.append(('v_max3_f32 v%d, v%d, v%d, v%d' % (dst + qb, dst + qb, regs[2 * step + 1], regs[2 * step + 2]), {}))
                else:
                    out.append(('v_max_f32 v%d, v%d, v%d' % (dst + qb, dst + qb, regs[15]), {}))
        return out

    def xlane(op, src, tmp):
        out = []
        for sw in ('v_permlane16_swap_b32', 'v_permlane32_swap_b32'):
            for qb in range(3):
                out.append(('v_mov_b32 v%d, v%d' % (tmp + qb, src + qb), {}))
            for qb in range(3):
                out.append(('%s v%d, v%d' % (sw, src + qb, tmp + qb), {}))
            for qb in range(3):
                out.append(('%s v%d, v%d, v%d' % (op, src + qb, src + qb, tmp + qb), {}))
        return out

    def exps(c):
        sb = V_S[c % 2]
        out = []
        for kb in range(4):
            for qb in range(3):
                base = sb + (kb * 3 + qb) * 4
                for r in range(4):
                    out.append(('v_fma_f32 v%d, v%d, s%d, -v%d' % (base + r, base + r, S_C, V_MC + qb), {}))
                for r in range(4):
                    out.append(('v_exp_f32 v%d, v%d' % (base + r, base + r), {}))
            if kb >= 1:
                out += cvts(c, kb - 1)
        out += cvts(c, 3)
        return out

    def cvts(c, kb):
        sb = V_S[c % 2]
        out = []
        for qb in range(3):
            base = sb + (kb * 3 + qb) * 4
            pr = V_P + ((kb >> 1) * 3 + qb) * 4 + (kb & 1) * 2
            out.append(('v_cvt_pk_bf16_f32 v%d, v%d, v%d' % (pr, base, base + 1), {}))
            out.append(('v_cvt_pk_bf16_f32 v%d, v%d, v%d' % (pr + 1, base + 2, base + 3), {}))
        return out

    def sums(c):
        sb = V_S[c % 2]
        out = []
        for kb in range(4):
            for r in range(4):
                for qb in range(3):
                    reg = sb + (kb * 3 + qb) * 4 + r
                    if c == 0 and kb == 0 and r == 0:
                        out.append(('v_mov_b32 v%d, v%d' % (V_L + qb, reg), {}))
                    else:
                        out.append(('v_add_f32 v%d, v%d, v%d' % (V_L + qb, V_L + qb, reg), {}))
        return out

    def check():
        out = []
        for qb in range(3):
            out.append(('v_fma_f32 v%d, v%d, s%d, -v%d' % (V_T + qb, V_CM + qb, S_C, V_MC + qb), {}))
        out.append(('v_max3_f32 v%d, v%d, v%d, v%d' % (V_T, V_T, V_T + 1, V_T + 2), {}))
        out.append(('v_cmp_lt_f32 s[78:79], s%d, v%d' % (S_THR, V_T), {}))
        return out

    phase_fill = {}
    hard = {}

    qconv = []
    for j in range(6):
        for qb in range(3):
            t0 = V_S[1] + ((j * 3 + qb) % 4) * 12
            for h2 in range(2):
                c0 = ((2 * j + h2) * 3 + qb) * 4
                for r in range(4):
                    qconv.append(('v_accvgpr_read_b32 v%d, a%d' % (t0 + h2 * 4 + r, c0 + r), {}))
            X = t0 + 8
            qconv.append(('v_cvt_pk_bf16_f32 v%d, v%d, v%d' % (X, t0, t0 + 1), {}))
            qconv.append(('v_cvt_pk_bf16_f32 v%d, v%d, v%d' % (X + 1, t0 + 2, t0 + 3), {}))
            qconv.append(('v_cvt_pk_bf16_f32 v%d, v%d, v%d' % (X + 2, t0 + 4, t0 + 5), {}))
            qconv.append(('v_cvt_pk_bf16_f32 v%d, v%d, v%d' % (X + 3, t0 + 6, t0 + 7), {}))
            qconv.append(('v_permlane32_swap_b32 v%d, v%d' % (X, X + 2), {}))
            qconv.append(('v_permlane32_swap_b32 v%d, v%d' % (X + 1, X + 3), {}))
            qconv.append(('v_permlane16_swap_b32 v%d, v%d' % (X, X + 2), {}))
            qconv.append(('v_permlane16_swap_b32 v%d, v%d' % (X + 1, X + 3), {}))
            q = A_Q + (j * 3 + qb) * 4
            for r in range(4):
                qconv.append(('v_accvgpr_write_b32 a%d, v%d' % (q + r, X + r), {}))
    hard[phase_start[('A', -1)]] = qconv

    for t in range(9):
        phase_fill[('QP', t)] = xperm(t + 1)
    hard[phase_start[('QP', 0)]] = xperm(0)
    for c in range(8):
        fa = []
        if c == 0:
            fa += maxtree(0, V_CM) + xlane('v_max_f32', V_CM, V_T)
            for qb in range(3):
                fa.append(('v_mul_f32 v%d, s%d, v%d' % (V_MC + qb, S_C, V_CM + qb), {}))
        fa += exps(c)
        phase_fill[('A', c)] = fa
        fb = sums(c)
        if c < 7:
            fb = fb[:24] + maxtree(c + 1, V_CM) + fb[24:] + check()
        phase_fill[('B', c)] = fb

    def emit_list(lst):
        for (s, kw) in lst:
            e(s, **kw)

    def frag_reads(fi, nxt_iter=False):
        f = frags[fi % NF]
        out = []
        ti = f['tile'] + (NT if fi >= NF else 0)
        if fi % NF == 0 or frags[(fi % NF) - 1]['tile'] != f['tile']:
            out += enter_tile(ti)
        r = V_A + (fi % RS) * 4
        for (op, ro, base, off) in f['reads']:
            if op == 'ds_read_b128':
                out.append(('ds_read_b128 v[%d:%d], v%d offset:%d' % (r, r + 3, base, off), {}))
            else:
                out.append(('%s v[%d:%d], v%d offset:%d' % (op, r + ro, r + ro + 1, base, off), {}))
        return out

    for ti in range(4):
        emit_list(dma(ti))
    for t in range(4):
        emit_list(xloads(t))
    for fi in range(LOOKAHEAD):
        emit_list(frag_reads(fi))
    spread[0] = True
    e('s_mov_b32 s76, 0')
    e('L1_head:')
    p.loop_begin()
    e('s_cmp_eq_u32 s76, 1')
    e('s_cselect_b32 s38, 0, %d' % WQ_BYTES)

    order = [('QP', t) for t in range(10)] + [('A', -1)]
    for c in range(8):
        order += [('A', c), ('B', c)]
    gcount = [0]
    for pi, ph in enumerate(order):
        a = phase_start[ph]
        b_ = phase_start[order[pi + 1]] if pi + 1 < len(order) else NF
        fill = phase_fill.get(ph, [])
        if a in hard:
            emit_list(hard[a])
        if ph[0] == 'QP' and 1 <= ph[1] and ph[1] + 3 < 10:
            for it in xloads(ph[1] + 3):
                pend.append([it])
        if TOUCH and ph[0] == 'QP' and ph[1] < 8:
            for n in range(ph[1] * 3, ph[1] * 3 + 3):
                kv, nn = n % 2, n // 2
                srd = 40 if kv == 0 else 44
                pend.append([('s_add_u32 s68, s56, %d' % (nn * 16384), {}),
                             ('buffer_load_dword v%d, v%d, s[%d:%d], s68 offen' % (V_DUMMY + n, V_TOUCH, srd, srd + 3), {})])
        nm = (b_ - a) * 3
        fi_done = 0
        mcount = 0
        for fi in range(a, b_):
            emit_list(frag_reads(fi + LOOKAHEAD))
            r = V_A + (fi % RS) * 4
            for (dst, bsrc, csrc) in frags[fi]['mf']:
                e('v_mfma_f32_16x16x32_bf16 %s, v[%d:%d], %s, %s' % (dst, r, r + 3, bsrc, csrc))
                mcount += 1
                gcount[0] += 1
                if pend and gcount[0] % SPREAD == 0:
                    emit_list(pend.pop(0))
                tgt = (len(fill) * mcount + nm - 1) // nm
                while fi_done < tgt:
                    s, kw = fill[fi_done]
                    e(s, **kw)
                    fi_done += 1
        while fi_done < len(fill):
            s, kw = fill[fi_done]
            e(s, **kw)
            fi_done += 1
        if ph[0] == 'B' and ph[1] < 7:
            e('s_cmp_lg_u64 s[78:79], 0')
            e('s_cbranch_scc0 L1_skip%d' % ph[1])
            e('s_swappc_b64 s[72:73], s[74:75]')
            e('L1_skip%d:' % ph[1])

    while pend:
        emit_list(pend.pop(0))
    for t in range(4):
        emit_list(xloads(t))
    emit_list(xlane('v_add_f32', V_L, V_T))
    for qb in range(3):
        e('v_rcp_f32 v%d, v%d' % (V_T + 3 + qb, V_L + qb))
    TMP = 144
    n = 0
    for j in range(6):
        for qb in range(3):
            t0 = TMP + (n % 2) * 12
            n += 1
            for h2 in range(2):
                c0 = ((2 * j + h2) * 3 + qb) * 4
                for r in range(4):
                    e('v_accvgpr_read_b32 v%d, a%d' % (t0 + h2 * 4 + r, c0 + r))
            for r in range(8):
                e('v_mul_f32 v%d, v%d, v%d' % (t0 + r, t0 + r, V_T + 3 + qb))
            X = t0 + 8
            e('v_cvt_pk_bf16_f32 v%d, v%d, v%d' % (X, t0, t0 + 1))
            e('v_cvt_pk_bf16_f32 v%d, v%d, v%d' % (X + 1, t0 + 2, t0 + 3))
            e('v_cvt_pk_bf16_f32 v%d, v%d, v%d' % (X + 2, t0 + 4, t0 + 5))
            e('v_cvt_pk_bf16_f32 v%d, v%d, v%d' % (X + 3, t0 + 6, t0 + 7))
            e('v_permlane32_swap_b32 v%d, v%d' % (X, X + 2))
            e('v_permlane32_swap_b32 v%d, v%d' % (X + 1, X + 3))
            e('v_permlane16_swap_b32 v%d, v%d' % (X, X + 2))
            e('v_permlane16_swap_b32 v%d, v%d' % (X + 1, X + 3))
            e('s_add_u32 s67, s59, %d' % (qb * 196608 + j * 1024))
            e('buffer_store_dwordx4 v[%d:%d], v%d, s[48:51], s67 offen' % (X, X + 3, V_OOFF))
    e('s_add_u32 s56, s56, 196608')
    e('s_add_u32 s57, s57, 384')
    e('s_add_u32 s59, s59, 6144')
    rot = NT % RING
    tmp = [80 + k for k in range(RING)]
    for k in range(RING):
        e('s_mov_b32 s%d, s%d' % (tmp[k], S_SLOT + (k + rot) % RING))
    for k in range(RING):
        e('s_mov_b32 s%d, s%d' % (S_SLOT + k, tmp[k]))
    e('s_add_u32 s76, s76, 1')
    e('s_cmp_lt_u32 s76, 2')
    e('s_cbranch_scc1 L1_head')
    p.loop_end(2)
    e('s_cmp_eq_u32 s52, 0')
    e('s_cselect_b32 s28, s12, s22')
    e('s_cselect_b32 s29, s13, s23')
    e('s_mov_b32 s30, %d' % WQ_BYTES)
    e('s_and_b32 s67, s2, 3')
    e('s_mul_i32 s67, s67, 1966080')
    e('s_lshr_b32 s68, s2, 3')
    e('s_lshl_b32 s68, s68, 2')
    e('s_add_u32 s68, s68, s55')
    e('s_mul_i32 s68, s68, 15360')
    e('s_add_u32 s67, s67, s68')
    e('v_lshlrev_b32 v40, 6, v%d' % V_LANE)
    for n in range(4):
        e('buffer_load_dword v%d, v40, s[28:31], s67 offen' % (V_DUMMY + n))
        e('s_add_u32 s67, s67, 4096')
    e('s_waitcnt vmcnt(0) lgkmcnt(0)')
    e('L1_end:')
    e('s_endpgm')
    body = p.finalize()

    r = []
    o = r.append
    o('L1_rescale:')
    o('    s_nop 15')
    for sw in ('v_permlane16_swap_b32', 'v_permlane32_swap_b32'):
        for qb in range(3):
            o('    v_mov_b32 v%d, v%d' % (V_T + qb, V_CM + qb))
        o('    s_nop 1')
        for qb in range(3):
            o('    %s v%d, v%d' % (sw, V_CM + qb, V_T + qb))
        o('    s_nop 1')
        for qb in range(3):
            o('    v_max_f32 v%d, v%d, v%d' % (V_CM + qb, V_CM + qb, V_T + qb))
        o('    s_nop 1')
    for qb in range(3):
        o('    v_mul_f32 v%d, s%d, v%d' % (V_T + qb, S_C, V_CM + qb))
    for qb in range(3):
        o('    v_max_f32 v%d, v%d, v%d' % (V_T + qb, V_T + qb, V_MC + qb))
    for qb in range(3):
        o('    v_sub_f32 v%d, v%d, v%d' % (V_T + 3 + qb, V_MC + qb, V_T + qb))
    for qb in range(3):
        o('    v_exp_f32 v%d, v%d' % (V_T + 3 + qb, V_T + 3 + qb))
    for qb in range(3):
        o('    v_mov_b32 v%d, v%d' % (V_MC + qb, V_T + qb))
    o('    s_nop 1')
    for qb in range(3):
        o('    v_mul_f32 v%d, v%d, v%d' % (V_L + qb, V_L + qb, V_T + 3 + qb))
    for db in range(12):
        for qb in range(3):
            c0 = (db * 3 + qb) * 4
            for rr in range(4):
                o('    v_accvgpr_read_b32 v%d, a%d' % (V_T + 6 + (rr & 1), c0 + rr))
                o('    v_mul_f32 v%d, v%d, v%d' % (V_T + 6 + (rr & 1), V_T + 6 + (rr & 1), V_T + 3 + qb))
                o('    v_accvgpr_write_b32 a%d, v%d' % (c0 + rr, V_T + 6 + (rr & 1)))
    o('    s_nop 3')
    o('    s_setpc_b64 s[72:73]')
    return body + '\n'.join(r) + '\n'


K1_DESC = '''.amdhsa_kernel {name}
  .amdhsa_next_free_vgpr 512
  .amdhsa_next_free_sgpr 96
  .amdhsa_accum_offset 256
  .amdhsa_group_segment_fixed_size 0
  .amdhsa_kernarg_size 104
  .amdhsa_user_sgpr_count 2
  .amdhsa_user_sgpr_kernarg_segment_ptr 1
  .amdhsa_system_sgpr_workgroup_id_x 1
.end_amdhsa_kernel
'''

if __name__ == '__main__':
    print(gen_k1('k1_kernel'))
```

```python
import math
from asmfw import Prog

X_BYTES = 8 * 192 * 640 * 2
KV_BYTES = 8 * 32 * 512 * 192 * 2
WQ_BYTES = 640 * 6144 * 2
WS_O_BYTES = 2 * 96 * 192 * 1024
TILE = 24576
RING = 6
LDS1 = TILE * RING
LOOKAHEAD = 5
SPREAD = 5
RS = 12

V_LANE = 1
V_GKV = 4
V_GW = 216
V_XOFF = 10
V_OOFF = 13
V_BP = 222
V_TOUCH = 223
V_DUMMY = 224
TOUCH = False
PRETOUCH = True
V_KP = 14
V_VP = 16
V_WP = 20
V_KW = 24
V_VW = 26
V_MC = 30
V_L = 33
V_CM = 36
V_T = 39
V_S = [48, 96]
V_P = 144
V_A = 168
A_Q = 144

S_SLOT = 60
S_WOFF = 66
S_C = 70
S_THR = 71


def f32bits(x):
    import struct
    return struct.unpack('<I', struct.pack('<f', x))[0]


def gen_k1(name):
    p = Prog()
    e = p.emit
    e(name + ':')
    e('s_cmp_ge_u32 s2, 256')
    e('s_cbranch_scc1 L1_end')
    e('s_load_dwordx16 s[4:19], s[0:1], 0')
    e('s_load_dwordx4 s[20:23], s[0:1], 64')
    e('s_load_dwordx2 s[24:25], s[0:1], 96')
    e('s_and_b32 s67, s2, 7')
    e('s_lshr_b32 s68, s2, 3')
    e('s_lshr_b32 s52, s67, 2')
    e('s_and_b32 s67, s67, 3')
    e('s_lshl_b32 s67, s67, 2')
    e('s_lshr_b32 s69, s68, 3')
    e('s_add_u32 s67, s67, s69')
    e('s_lshl_b32 s54, s67, 1')
    e('s_and_b32 s53, s68, 7')
    e('v_lshrrev_b32 v2, 6, v0')
    e('v_and_b32 v%d, 63, v0' % V_LANE)
    e('v_readfirstlane_b32 s55, v2')
    e('s_waitcnt lgkmcnt(0)')
    e('s_cmp_eq_u32 s52, 0')
    for (dst, a, b_, sz) in ((28, 4, 14, X_BYTES), (32, 10, 20, WQ_BYTES), (36, 10, 20, WQ_BYTES),
                             (40, 6, 16, KV_BYTES), (44, 8, 18, KV_BYTES)):
        e('s_cselect_b32 s%d, s%d, s%d' % (dst, a, b_))
        e('s_cselect_b32 s%d, s%d, s%d' % (dst + 1, a + 1, b_ + 1))
        e('s_mov_b32 s%d, %d' % (dst + 2, sz))
        e('s_mov_b32 s%d, 0x00020000' % (dst + 3))
    e('s_mov_b32 s48, s24')
    e('s_mov_b32 s49, s25')
    e('s_mov_b32 s50, %d' % WS_O_BYTES)
    e('s_mov_b32 s51, 0x00020000')
    e('s_lshl_b32 s56, s53, 5')
    e('s_add_u32 s56, s56, s54')
    e('s_mul_i32 s56, s56, 196608')
    e('s_mul_i32 s57, s54, 384')
    e('s_mul_i32 s58, s53, 245760')
    e('s_mul_i32 s59, s52, 96')
    e('s_mul_i32 s67, s53, 12')
    e('s_add_u32 s59, s59, s67')
    e('s_mul_i32 s67, s55, 3')
    e('s_add_u32 s59, s59, s67')
    e('s_mul_i32 s59, s59, 192')
    e('s_mul_i32 s67, s54, 6')
    e('s_add_u32 s59, s59, s67')
    e('s_lshl_b32 s59, s59, 10')
    for k in range(RING):
        e('s_mov_b32 s%d, %d' % (S_SLOT + k, k * TILE))
    e('s_mul_i32 s%d, s55, 6144' % S_WOFF)
    cs = (192.0 ** -0.5) * math.log2(math.e)
    e('s_mov_b32 s%d, 0x%08x' % (S_C, f32bits(cs)))
    e('s_mov_b32 s%d, 0x%08x' % (S_THR, f32bits(8.0)))
    e('s_getpc_b64 s[74:75]')
    e('L1_pc:')
    e('s_add_u32 s74, s74, L1_rescale-L1_pc')
    e('s_addc_u32 s75, s75, 0')
    L = V_LANE
    e('v_lshrrev_b32 v2, 4, v%d' % L)
    e('v_and_b32 v3, 15, v%d' % L)
    for j in range(3):
        e('v_add_u32 v40, %d, v%d' % (j * 64, L))
        e('v_mul_u32_u24 v41, 2731, v40')
        e('v_lshrrev_b32 v41, 16, v41')
        e('v_mul_u32_u24 v42, 24, v41')
        e('v_sub_u32 v42, v40, v42')
        e('v_xor_b32 v43, v42, v41')
        e('v_and_b32 v43, 7, v43')
        e('v_and_b32 v44, 24, v42')
        e('v_or_b32 v43, v43, v44')
        e('v_mul_u32_u24 v45, 384, v41')
        e('v_lshl_add_u32 v45, v43, 4, v45')
        e('v_add_u32 v45, s%d, v45' % S_WOFF)
        if j:
            e('v_subrev_u32 v45, %d, v45' % (j * 1024))
        e('v_mov_b32 v%d, v45' % (V_GKV + j))
        for half in range(2):
            e('v_and_b32 v43, 2, v41')
            if half:
                e('v_or_b32 v43, 4, v43')
            e('v_xor_b32 v43, v42, v43')
            e('v_and_b32 v43, 7, v43')
            e('v_or_b32 v43, v43, v44')
            e('s_lshl_b32 s67, s55, 4')
            e('v_add_u32 v45, %d, v41' % (half * 8))
            e('v_add_u32 v45, s67, v45')
            e('v_mul_u32_u24 v45, 12288, v45')
            e('v_lshl_add_u32 v45, v43, 4, v45')
            if j:
                e('v_subrev_u32 v45, %d, v45' % (j * 1024))
            e('v_mov_b32 v%d, v45' % (V_GW + half * 3 + j))
    e('s_mul_i32 s67, s55, 48')
    e('v_lshrrev_b32 v40, 2, v%d' % L)
    e('v_add_u32 v40, s67, v40')
    e('v_mul_u32_u24 v40, 1280, v40')
    e('v_and_b32 v41, 3, v%d' % L)
    e('v_lshl_add_u32 v%d, v41, 4, v40' % V_XOFF)
    e('v_lshl_add_u32 v40, v3, 2, v2')
    e('v_lshlrev_b32 v%d, 2, v40' % V_BP)
    e('v_add_u32 v%d, %d, v%d' % (V_XOFF + 1, 16 * 1280, V_XOFF))
    e('v_add_u32 v%d, %d, v%d' % (V_XOFF + 2, 32 * 1280, V_XOFF))
    e('v_lshlrev_b32 v%d, 4, v%d' % (V_OOFF, L))
    e('s_lshl_b32 s67, s55, 12')
    e('v_lshlrev_b32 v40, 6, v%d' % L)
    e('v_add_u32 v%d, s67, v40' % V_TOUCH)
    e('v_and_b32 v40, 7, v%d' % L)
    e('v_xor_b32 v40, v40, v2')
    e('v_mul_u32_u24 v41, 384, v3')
    e('v_lshl_add_u32 v%d, v40, 4, v41' % V_KP)
    e('v_xor_b32 v%d, 64, v%d' % (V_KP + 1, V_KP))
    e('v_lshrrev_b32 v40, 2, v3')
    e('v_lshl_add_u32 v40, v2, 2, v40')
    e('v_and_b32 v41, 7, v40')
    e('v_bfe_u32 v42, v3, 1, 1')
    e('v_xor_b32 v41, v41, v42')
    e('v_mul_u32_u24 v40, 384, v40')
    e('v_and_b32 v43, 1, v3')
    e('v_lshl_add_u32 v40, v43, 3, v40')
    for j in range(4):
        e('v_xor_b32 v44, %d, v41' % (2 * j))
        e('v_lshl_add_u32 v%d, v44, 4, v40' % (V_VP + j))
    e('v_lshrrev_b32 v40, 2, v3')
    e('v_lshl_add_u32 v40, v2, 3, v40')
    e('v_bfe_u32 v41, v3, 3, 1')
    e('v_lshlrev_b32 v41, 1, v41')
    e('v_and_b32 v44, 1, v2')
    e('v_lshl_or_b32 v41, v44, 2, v41')
    e('v_xor_b32 v41, v41, v42')
    e('v_mul_u32_u24 v40, 384, v40')
    e('v_lshl_add_u32 v40, v43, 3, v40')
    for j in range(4):
        e('v_xor_b32 v44, %d, v41' % (2 * j))
        e('v_lshl_add_u32 v%d, v44, 4, v40' % (V_WP + j))

    tiles = [('W', t) for t in range(10)] + [('K', 0)]
    for c in range(7):
        tiles += [('K', c + 1), ('V', c)]
    tiles += [('V', 7)]
    NT = len(tiles)
    tindex = {t: i for i, t in enumerate(tiles)}

    def dma(ti):
        nxt = ti >= NT
        kind, idx = tiles[ti % NT]
        slot = S_SLOT + (ti % RING)
        tag = 'T%d' % (ti % NT)
        out = []
        o = lambda s, **kw: out.append((s, kw))
        o('s_add_u32 m0, s%d, s%d' % (slot, S_WOFF))
        if kind == 'W':
            srd = 36 if nxt else 32
            off = idx * 64 * 12288 + (384 if nxt else 0)
            o('s_add_u32 s67, s57, %d' % off)
            for j in range(3):
                o('buffer_load_dwordx4 v%d, s[%d:%d], s67 offen offset:%d lds' % (V_GW + j, srd, srd + 3, j * 1024), tag=tag)
            o('s_add_u32 m0, m0, 3072')
            for j in range(3):
                o('buffer_load_dwordx4 v%d, s[%d:%d], s67 offen offset:%d lds' % (V_GW + 3 + j, srd, srd + 3, j * 1024), tag=tag)
        else:
            assert not nxt
            srd = 40 if kind == 'K' else 44
            o('s_add_u32 s67, s56, %d' % (idx * TILE))
            for j in range(3):
                o('buffer_load_dwordx4 v%d, s[%d:%d], s67 offen offset:%d lds' % (V_GKV + j, srd, srd + 3, j * 1024), tag=tag)
            o('s_add_u32 m0, m0, 3072')
            o('s_add_u32 s67, s67, 3072')
            for j in range(3):
                o('buffer_load_dwordx4 v%d, s[%d:%d], s67 offen offset:%d lds' % (V_GKV + j, srd, srd + 3, j * 1024), tag=tag)
        return out

    def xloads(t):
        out = []
        for ks in range(2):
            for qb in range(3):
                r = V_S[0] + (t % 4) * 24 + (ks * 3 + qb) * 4
                out.append(('buffer_load_dwordx4 v[%d:%d], v%d, s[28:31], s58 offen offset:%d' %
                            (r, r + 3, V_XOFF + qb, (t * 2 + ks) * 64), {}))
        return out

    def xperm(t):
        out = []
        for f in range(6):
            r = V_S[0] + (t % 4) * 24 + f * 4
            for q in range(4):
                out.append(('ds_bpermute_b32 v%d, v%d, v%d' % (r + q, V_BP, r + q), {}))
        return out

    pend = []
    spread = [False]

    def enter_tile(ti):
        kind, idx = tiles[ti % NT]
        slot = S_SLOT + (ti % RING)
        out = [('s_barrier', dict(need=['T%d' % (ti % NT)]))]
        if kind == 'K':
            for j in range(2):
                out.append(('v_add_u32 v%d, s%d, v%d' % (V_KW + j, slot, V_KP + j), {}))
        else:
            src = V_VP if kind == 'V' else V_WP
            for j in range(4):
                out.append(('v_add_u32 v%d, s%d, v%d' % (V_VW + j, slot, src + j), {}))
        if spread[0]:
            grp = []
            for it in dma(ti + 4):
                grp.append(it)
                if it[0].startswith('buffer_load'):
                    pend.append(grp); grp = []
        else:
            out += dma(ti + 4)
        return out

    frags = []

    def add_frag(ti, reads, mf):
        frags.append(dict(tile=ti, reads=reads, mf=mf, fill=[], hard_before=[]))

    phase_start = {}

    def acc(db, qb):
        c = (db * 3 + qb) * 4
        return 'a[%d:%d]' % (c, c + 3)

    for t in range(10):
        ti = tindex[('W', t)]
        phase_start[('QP', t)] = len(frags)
        for ks in range(2):
            for dqb in range(12):
                off = (dqb >> 2) * 128 + ks * 12288
                b = V_VW + (dqb & 3)
                reads = [('ds_read_b64_tr_b16', 0, b, off), ('ds_read_b64_tr_b16', 2, b, off + 1536)]
                mf = []
                for qb in range(3):
                    xr = V_S[0] + (t % 4) * 24 + (ks * 3 + qb) * 4
                    src = '0' if (t == 0 and ks == 0) else acc(dqb, qb)
                    mf.append((acc(dqb, qb), 'v[%d:%d]' % (xr, xr + 3), src))
                add_frag(ti, reads, mf)

    def add_qk(c):
        ti = tindex[('K', c)]
        sb = V_S[c % 2]
        for kb in range(4):
            for ds in range(6):
                off = kb * 6144 + (ds >> 1) * 128
                reads = [('ds_read_b128', 0, V_KW + (ds & 1), off)]
                mf = []
                for qb in range(3):
                    d = sb + (kb * 3 + qb) * 4
                    q = A_Q + (ds * 3 + qb) * 4
                    dst = 'v[%d:%d]' % (d, d + 3)
                    mf.append((dst, 'a[%d:%d]' % (q, q + 3), '0' if ds == 0 else dst))
                add_frag(ti, reads, mf)

    def add_pv(c):
        ti = tindex[('V', c)]
        for ks in range(2):
            for db in range(12):
                off = (db >> 2) * 128 + ks * 12288
                b = V_VW + (db & 3)
                reads = [('ds_read_b64_tr_b16', 0, b, off), ('ds_read_b64_tr_b16', 2, b, off + 6144)]
                mf = []
                for qb in range(3):
                    pr = V_P + (ks * 3 + qb) * 4
                    src = '0' if (c == 0 and ks == 0) else acc(db, qb)
                    mf.append((acc(db, qb), 'v[%d:%d]' % (pr, pr + 3), src))
                add_frag(ti, reads, mf)

    phase_start[('A', -1)] = len(frags)
    add_qk(0)
    for c in range(8):
        phase_start[('A', c)] = len(frags)
        if c < 7:
            add_qk(c + 1)
        phase_start[('B', c)] = len(frags)
        add_pv(c)
    NF = len(frags)
    assert NF % RS == 0, NF
    phase_start['END'] = NF

    def maxtree(c, dst):
        sb = V_S[c % 2]
        out = []
        for step in range(8):
            for qb in range(3):
                regs = [sb + (kb * 3 + qb) * 4 + r for kb in range(4) for r in range(4)]
                if step == 0:
                    out.append(('v_max3_f32 v%d, v%d, v%d, v%d' % (dst + qb, regs[0], regs[1], regs[2]), {}))
                elif step < 7:
                    out.append(('v_max3_f32 v%d, v%d, v%d, v%d' % (dst + qb, dst + qb, regs[2 * step + 1], regs[2 * step + 2]), {}))
                else:
                    out.append(('v_max_f32 v%d, v%d, v%d' % (dst + qb, dst + qb, regs[15]), {}))
        return out

    def xlane(op, src, tmp):
        out = []
        for sw in ('v_permlane16_swap_b32', 'v_permlane32_swap_b32'):
            for qb in range(3):
                out.append(('v_mov_b32 v%d, v%d' % (tmp + qb, src + qb), {}))
            for qb in range(3):
                out.append(('%s v%d, v%d' % (sw, src + qb, tmp + qb), {}))
            for qb in range(3):
                out.append(('%s v%d, v%d, v%d' % (op, src + qb, src + qb, tmp + qb), {}))
        return out

    def exps(c):
        sb = V_S[c % 2]
        out = []
        for kb in range(4):
            for qb in range(3):
                base = sb + (kb * 3 + qb) * 4
                for r in range(4):
                    out.append(('v_fma_f32 v%d, v%d, s%d, -v%d' % (base + r, base + r, S_C, V_MC + qb), {}))
                for r in range(4):
                    out.append(('v_exp_f32 v%d, v%d' % (base + r, base + r), {}))
            if kb >= 1:
                out += cvts(c, kb - 1)
        out += cvts(c, 3)
        return out

    def cvts(c, kb):
        sb = V_S[c % 2]
        out = []
        for qb in range(3):
            base = sb + (kb * 3 + qb) * 4
            pr = V_P + ((kb >> 1) * 3 + qb) * 4 + (kb & 1) * 2
            out.append(('v_cvt_pk_bf16_f32 v%d, v%d, v%d' % (pr, base, base + 1), {}))
            out.append(('v_cvt_pk_bf16_f32 v%d, v%d, v%d' % (pr + 1, base + 2, base + 3), {}))
        return out

    def sums(c):
        sb = V_S[c % 2]
        out = []
        for kb in range(4):
            for r in range(4):
                for qb in range(3):
                    reg = sb + (kb * 3 + qb) * 4 + r
                    if c == 0 and kb == 0 and r == 0:
                        out.append(('v_mov_b32 v%d, v%d' % (V_L + qb, reg), {}))
                    else:
                        out.append(('v_add_f32 v%d, v%d, v%d' % (V_L + qb, V_L + qb, reg), {}))
        return out

    def check():
        out = []
        for qb in range(3):
            out.append(('v_fma_f32 v%d, v%d, s%d, -v%d' % (V_T + qb, V_CM + qb, S_C, V_MC + qb), {}))
        out.append(('v_max3_f32 v%d, v%d, v%d, v%d' % (V_T, V_T, V_T + 1, V_T + 2), {}))
        out.append(('v_cmp_lt_f32 s[78:79], s%d, v%d' % (S_THR, V_T), {}))
        return out

    phase_fill = {}
    hard = {}

    qconv = []
    for j in range(6):
        for qb in range(3):
            t0 = V_S[1] + ((j * 3 + qb) % 4) * 12
            for h2 in range(2):
                c0 = ((2 * j + h2) * 3 + qb) * 4
                for r in range(4):
                    qconv.append(('v_accvgpr_read_b32 v%d, a%d' % (t0 + h2 * 4 + r, c0 + r), {}))
            X = t0 + 8
            qconv.append(('v_cvt_pk_bf16_f32 v%d, v%d, v%d' % (X, t0, t0 + 1), {}))
            qconv.append(('v_cvt_pk_bf16_f32 v%d, v%d, v%d' % (X + 1, t0 + 2, t0 + 3), {}))
            qconv.append(('v_cvt_pk_bf16_f32 v%d, v%d, v%d' % (X + 2, t0 + 4, t0 + 5), {}))
            qconv.append(('v_cvt_pk_bf16_f32 v%d, v%d, v%d' % (X + 3, t0 + 6, t0 + 7), {}))
            qconv.append(('v_permlane32_swap_b32 v%d, v%d' % (X, X + 2), {}))
            qconv.append(('v_permlane32_swap_b32 v%d, v%d' % (X + 1, X + 3), {}))
            qconv.append(('v_permlane16_swap_b32 v%d, v%d' % (X, X + 2), {}))
            qconv.append(('v_permlane16_swap_b32 v%d, v%d' % (X + 1, X + 3), {}))
            q = A_Q + (j * 3 + qb) * 4
            for r in range(4):
                qconv.append(('v_accvgpr_write_b32 a%d, v%d' % (q + r, X + r), {}))
    hard[phase_start[('A', -1)]] = qconv

    for t in range(9):
        phase_fill[('QP', t)] = xperm(t + 1)
    hard[phase_start[('QP', 0)]] = xperm(0)
    for c in range(8):
        fa = []
        if c == 0:
            fa += maxtree(0, V_CM) + xlane('v_max_f32', V_CM, V_T)
            for qb in range(3):
                fa.append(('v_mul_f32 v%d, s%d, v%d' % (V_MC + qb, S_C, V_CM + qb), {}))
        fa += exps(c)
        phase_fill[('A', c)] = fa
        fb = sums(c)
        if c < 7:
            fb = fb[:24] + maxtree(c + 1, V_CM) + fb[24:] + check()
        phase_fill[('B', c)] = fb

    def emit_list(lst):
        for (s, kw) in lst:
            e(s, **kw)

    def frag_reads(fi, nxt_iter=False):
        f = frags[fi % NF]
        out = []
        ti = f['tile'] + (NT if fi >= NF else 0)
        if fi % NF == 0 or frags[(fi % NF) - 1]['tile'] != f['tile']:
            out += enter_tile(ti)
        r = V_A + (fi % RS) * 4
        for (op, ro, base, off) in f['reads']:
            if op == 'ds_read_b128':
                out.append(('ds_read_b128 v[%d:%d], v%d offset:%d' % (r, r + 3, base, off), {}))
            else:
                out.append(('%s v[%d:%d], v%d offset:%d' % (op, r + ro, r + ro + 1, base, off), {}))
        return out

    for ti in range(4):
        emit_list(dma(ti))
    for t in range(4):
        emit_list(xloads(t))
    if PRETOUCH:
        e('s_lshl_b32 s67, s53, 2')
        e('s_add_u32 s67, s67, s55')
        e('s_mul_i32 s67, s67, %d' % (20 * 12288))
        e('s_add_u32 s67, s67, s57')
        e('s_lshr_b32 s68, s2, 6')
        e('s_lshl_b32 s68, s68, 2')
        e('s_add_u32 s68, s68, s55')
        e('s_mul_i32 s68, s68, %d' % (12 * 1280))
        e('s_add_u32 s68, s68, s58')
        for n in range(4):
            e('v_add_u32 v40, %d, v%d' % (n * 64, V_LANE))
            e('v_min_u32 v40, 239, v40')
            e('v_mul_u32_u24 v41, 5462, v40')
            e('v_lshrrev_b32 v41, 16, v41')
            e('v_mul_u32_u24 v42, 12, v41')
            e('v_sub_u32 v42, v40, v42')
            e('v_mul_u32_u24 v41, 12288, v41')
            e('v_lshl_add_u32 v41, v42, 6, v41')
            e('buffer_load_dword v%d, v41, s[32:35], s67 offen' % (V_DUMMY + n))
            e('v_mul_u32_u24 v41, 3277, v40')
            e('v_lshrrev_b32 v41, 16, v41')
            e('v_mul_u32_u24 v42, 20, v41')
            e('v_sub_u32 v42, v40, v42')
            e('v_mul_u32_u24 v41, 1280, v41')
            e('v_lshl_add_u32 v41, v42, 6, v41')
            e('buffer_load_dword v%d, v41, s[28:31], s68 offen' % (V_DUMMY + 4 + n))
    for fi in range(LOOKAHEAD):
        emit_list(frag_reads(fi))
    spread[0] = True
    e('s_mov_b32 s76, 0')
    e('L1_head:')
    p.loop_begin()
    e('s_cmp_eq_u32 s76, 1')
    e('s_cselect_b32 s38, 0, %d' % WQ_BYTES)

    order = [('QP', t) for t in range(10)] + [('A', -1)]
    for c in range(8):
        order += [('A', c), ('B', c)]
    gcount = [0]
    for pi, ph in enumerate(order):
        a = phase_start[ph]
        b_ = phase_start[order[pi + 1]] if pi + 1 < len(order) else NF
        fill = phase_fill.get(ph, [])
        if a in hard:
            emit_list(hard[a])
        if ph[0] == 'QP' and 1 <= ph[1] and ph[1] + 3 < 10:
            for it in xloads(ph[1] + 3):
                pend.append([it])
        if TOUCH and ph[0] == 'QP' and ph[1] < 8:
            for n in range(ph[1] * 3, ph[1] * 3 + 3):
                kv, nn = n % 2, n // 2
                srd = 40 if kv == 0 else 44
                pend.append([('s_add_u32 s68, s56, %d' % (nn * 16384), {}),
                             ('buffer_load_dword v%d, v%d, s[%d:%d], s68 offen' % (V_DUMMY + n, V_TOUCH, srd, srd + 3), {})])
        nm = (b_ - a) * 3
        fi_done = 0
        mcount = 0
        for fi in range(a, b_):
            emit_list(frag_reads(fi + LOOKAHEAD))
            r = V_A + (fi % RS) * 4
            for (dst, bsrc, csrc) in frags[fi]['mf']:
                e('v_mfma_f32_16x16x32_bf16 %s, v[%d:%d], %s, %s' % (dst, r, r + 3, bsrc, csrc))
                mcount += 1
                gcount[0] += 1
                if pend and gcount[0] % SPREAD == 0:
                    emit_list(pend.pop(0))
                tgt = (len(fill) * mcount + nm - 1) // nm
                while fi_done < tgt:
                    s, kw = fill[fi_done]
                    e(s, **kw)
                    fi_done += 1
        while fi_done < len(fill):
            s, kw = fill[fi_done]
            e(s, **kw)
            fi_done += 1
        if ph[0] == 'B' and ph[1] < 7:
            e('s_cmp_lg_u64 s[78:79], 0')
            e('s_cbranch_scc0 L1_skip%d' % ph[1])
            e('s_swappc_b64 s[72:73], s[74:75]')
            e('L1_skip%d:' % ph[1])

    while pend:
        emit_list(pend.pop(0))
    for t in range(4):
        emit_list(xloads(t))
    emit_list(xlane('v_add_f32', V_L, V_T))
    for qb in range(3):
        e('v_rcp_f32 v%d, v%d' % (V_T + 3 + qb, V_L + qb))
    TMP = 144
    n = 0
    for j in range(6):
        for qb in range(3):
            t0 = TMP + (n % 2) * 12
            n += 1
            for h2 in range(2):
                c0 = ((2 * j + h2) * 3 + qb) * 4
                for r in range(4):
                    e('v_accvgpr_read_b32 v%d, a%d' % (t0 + h2 * 4 + r, c0 + r))
            for r in range(8):
                e('v_mul_f32 v%d, v%d, v%d' % (t0 + r, t0 + r, V_T + 3 + qb))
            X = t0 + 8
            e('v_cvt_pk_bf16_f32 v%d, v%d, v%d' % (X, t0, t0 + 1))
            e('v_cvt_pk_bf16_f32 v%d, v%d, v%d' % (X + 1, t0 + 2, t0 + 3))
            e('v_cvt_pk_bf16_f32 v%d, v%d, v%d' % (X + 2, t0 + 4, t0 + 5))
            e('v_cvt_pk_bf16_f32 v%d, v%d, v%d' % (X + 3, t0 + 6, t0 + 7))
            e('v_permlane32_swap_b32 v%d, v%d' % (X, X + 2))
            e('v_permlane32_swap_b32 v%d, v%d' % (X + 1, X + 3))
            e('v_permlane16_swap_b32 v%d, v%d' % (X, X + 2))
            e('v_permlane16_swap_b32 v%d, v%d' % (X + 1, X + 3))
            e('s_add_u32 s67, s59, %d' % (qb * 196608 + j * 1024))
            e('buffer_store_dwordx4 v[%d:%d], v%d, s[48:51], s67 offen' % (X, X + 3, V_OOFF))
    e('s_add_u32 s56, s56, 196608')
    e('s_add_u32 s57, s57, 384')
    e('s_add_u32 s59, s59, 6144')
    rot = NT % RING
    tmp = [80 + k for k in range(RING)]
    for k in range(RING):
        e('s_mov_b32 s%d, s%d' % (tmp[k], S_SLOT + (k + rot) % RING))
    for k in range(RING):
        e('s_mov_b32 s%d, s%d' % (S_SLOT + k, tmp[k]))
    e('s_add_u32 s76, s76, 1')
    e('s_cmp_lt_u32 s76, 2')
    e('s_cbranch_scc1 L1_head')
    p.loop_end(2)
    e('s_cmp_eq_u32 s52, 0')
    e('s_cselect_b32 s28, s12, s22')
    e('s_cselect_b32 s29, s13, s23')
    e('s_mov_b32 s30, %d' % WQ_BYTES)
    e('s_and_b32 s67, s2, 3')
    e('s_mul_i32 s67, s67, 1966080')
    e('s_lshr_b32 s68, s2, 3')
    e('s_lshl_b32 s68, s68, 2')
    e('s_add_u32 s68, s68, s55')
    e('s_mul_i32 s68, s68, 15360')
    e('s_add_u32 s67, s67, s68')
    e('v_lshlrev_b32 v40, 6, v%d' % V_LANE)
    for n in range(4):
        e('buffer_load_dword v%d, v40, s[28:31], s67 offen' % (V_DUMMY + n))
        e('s_add_u32 s67, s67, 4096')
    e('s_waitcnt vmcnt(0) lgkmcnt(0)')
    e('L1_end:')
    e('s_endpgm')
    body = p.finalize()

    r = []
    o = r.append
    o('L1_rescale:')
    o('    s_nop 15')
    for sw in ('v_permlane16_swap_b32', 'v_permlane32_swap_b32'):
        for qb in range(3):
            o('    v_mov_b32 v%d, v%d' % (V_T + qb, V_CM + qb))
        o('    s_nop 1')
        for qb in range(3):
            o('    %s v%d, v%d' % (sw, V_CM + qb, V_T + qb))
        o('    s_nop 1')
        for qb in range(3):
            o('    v_max_f32 v%d, v%d, v%d' % (V_CM + qb, V_CM + qb, V_T + qb))
        o('    s_nop 1')
    for qb in range(3):
        o('    v_mul_f32 v%d, s%d, v%d' % (V_T + qb, S_C, V_CM + qb))
    for qb in range(3):
        o('    v_max_f32 v%d, v%d, v%d' % (V_T + qb, V_T + qb, V_MC + qb))
    for qb in range(3):
        o('    v_sub_f32 v%d, v%d, v%d' % (V_T + 3 + qb, V_MC + qb, V_T + qb))
    for qb in range(3):
        o('    v_exp_f32 v%d, v%d' % (V_T + 3 + qb, V_T + 3 + qb))
    for qb in range(3):
        o('    v_mov_b32 v%d, v%d' % (V_MC + qb, V_T + qb))
    o('    s_nop 1')
    for qb in range(3):
        o('    v_mul_f32 v%d, v%d, v%d' % (V_L + qb, V_L + qb, V_T + 3 + qb))
    for db in range(12):
        for qb in range(3):
            c0 = (db * 3 + qb) * 4
            for rr in range(4):
                o('    v_accvgpr_read_b32 v%d, a%d' % (V_T + 6 + (rr & 1), c0 + rr))
                o('    v_mul_f32 v%d, v%d, v%d' % (V_T + 6 + (rr & 1), V_T + 6 + (rr & 1), V_T + 3 + qb))
                o('    v_accvgpr_write_b32 a%d, v%d' % (c0 + rr, V_T + 6 + (rr & 1)))
    o('    s_nop 3')
    o('    s_setpc_b64 s[72:73]')
    return body + '\n'.join(r) + '\n'


K1_DESC = '''.amdhsa_kernel {name}
  .amdhsa_next_free_vgpr 512
  .amdhsa_next_free_sgpr 96
  .amdhsa_accum_offset 256
  .amdhsa_group_segment_fixed_size 0
  .amdhsa_kernarg_size 104
  .amdhsa_user_sgpr_count 2
  .amdhsa_user_sgpr_kernarg_segment_ptr 1
  .amdhsa_system_sgpr_workgroup_id_x 1
.end_amdhsa_kernel
'''

if __name__ == '__main__':
    print(gen_k1('k1_kernel'))
```

```python
import re

TRANS = ('v_exp_f32', 'v_log_f32', 'v_rcp_f32', 'v_rsq_f32', 'v_sqrt_f32', 'v_sin_f32', 'v_cos_f32')

_reg_re = re.compile(r'^(-|abs\(|-abs\()?([vas])(\d+)\)?$')
_rng_re = re.compile(r'^([vas])\[(\d+):(\d+)\]$')


def regs_of(tok):
    tok = tok.strip()
    m = _rng_re.match(tok)
    if m:
        return [(m.group(1), i) for i in range(int(m.group(2)), int(m.group(3)) + 1)]
    m = _reg_re.match(tok)
    if m:
        return [(m.group(2), int(m.group(3)))]
    if tok == 'vcc':
        return [('vcc', 0)]
    if tok == 'm0':
        return [('m0', 0)]
    if tok == 'exec':
        return [('exec', 0)]
    return []


class Inst:
    __slots__ = ('text', 'op', 'rd', 'wr', 'kind', 'tag', 'need', 'pre_nop', 'wait_vm', 'wait_lgkm', 'srcc', 'comment')

    def __init__(self, text, tag=None, need=None, comment=None):
        self.text = text
        self.tag = tag
        self.need = need
        self.pre_nop = 0
        self.wait_vm = None
        self.wait_lgkm = None
        self.srcc = []
        self.comment = comment
        self.parse()

    def parse(self):
        t = self.text.strip()
        if t.endswith(':'):
            self.op = 'label'; self.kind = 'label'; self.rd = []; self.wr = []
            return
        parts = t.split(None, 1)
        op = parts[0]
        self.op = op
        rest = parts[1] if len(parts) > 1 else ''
        ops = [x.strip() for x in rest.split(',')] if rest else []
        mods = []
        if ops:
            last = ops[-1].split()
            if last:
                ops[-1] = last[0]
                mods = last[1:]
        rd, wr = [], []
        k = 'other'
        if op.startswith('v_mfma'):
            k = 'mfma'
            wr = regs_of(ops[0]); rd = regs_of(ops[1]) + regs_of(ops[2]) + regs_of(ops[3])
            self.srcc = regs_of(ops[3])
        elif op.startswith('v_permlane') and 'swap' in op:
            k = 'permlane'
            wr = regs_of(ops[0]) + regs_of(ops[1]); rd = list(wr)
        elif op.startswith('v_cmp'):
            k = 'valu'
            wr = regs_of(ops[0]); rd = sum((regs_of(x) for x in ops[1:]), [])
        elif op.startswith('v_readfirstlane') or op.startswith('v_readlane'):
            k = 'readlane'
            wr = regs_of(ops[0]); rd = sum((regs_of(x) for x in ops[1:]), [])
        elif op.startswith('v_'):
            k = 'trans' if op.split('_e')[0] in TRANS or op in TRANS else 'valu'
            wr = regs_of(ops[0]); rd = sum((regs_of(x) for x in ops[1:]), [])
            if op.startswith('v_fmac') or op.startswith('v_pk_fmac'):
                rd += wr
            if op.startswith('v_add_co') or op.startswith('v_addc_co'):
                wr += regs_of(ops[1])
        elif op.startswith('ds_bpermute'):
            k = 'ds_rd'
            wr = regs_of(ops[0]); rd = regs_of(ops[1]) + regs_of(ops[2])
        elif op.startswith('ds_read'):
            k = 'ds_rd'
            wr = regs_of(ops[0]); rd = regs_of(ops[1])
        elif op.startswith('ds_write'):
            k = 'ds_wr'
            rd = sum((regs_of(x) for x in ops), [])
        elif op.startswith('buffer_load'):
            if 'lds' in mods:
                k = 'vm_dma'
                rd = sum((regs_of(x) for x in ops), []) + [('m0', 0)]
            else:
                k = 'vm_ld'
                wr = regs_of(ops[0]); rd = sum((regs_of(x) for x in ops[1:]), [])
        elif op.startswith('buffer_store'):
            k = 'vm_st'
            rd = sum((regs_of(x) for x in ops), [])
            self.srcc = regs_of(ops[0])
        elif op.startswith('s_load'):
            k = 'smem'
            wr = regs_of(ops[0]); rd = regs_of(ops[1])
        elif op == 's_nop':
            k = 'nop'
        elif op == 's_waitcnt':
            k = 'wait'
        elif op == 's_barrier':
            k = 'barrier'
        elif op.startswith('s_cbranch') or op == 's_branch' or op == 's_endpgm':
            k = 'branch'
        elif op.startswith('s_cmp'):
            k = 'salu'
            rd = sum((regs_of(x) for x in ops), [])
        elif op in ('s_setprio', 's_sleep'):
            k = 'salu'
        elif op == 's_swappc_b64':
            k = 'salu'
            wr = regs_of(ops[0]); rd = regs_of(ops[1])
        elif op == 's_setpc_b64':
            k = 'branch'
            rd = regs_of(ops[0])
        elif op.startswith('s_'):
            k = 'salu'
            wr = regs_of(ops[0]); rd = sum((regs_of(x) for x in ops[1:]), [])
        else:
            raise ValueError('unknown instruction: ' + t)
        self.kind = k
        self.rd = rd
        self.wr = wr

    def nstates(self):
        if self.kind == 'label':
            return 0
        if self.kind == 'nop':
            return int(self.text.split()[1]) + 1
        return 1


class Prog:
    def __init__(self):
        self.ins = []
        self.segs = []
        self._loop_start = None
        self.custom = None

    def emit(self, text, tag=None, need=None, comment=None):
        i = Inst(text, tag, need, comment)
        self.ins.append(i)
        return i

    def __call__(self, text, **kw):
        return self.emit(text, **kw)

    def loop_begin(self):
        self._loop_start = len(self.ins)

    def loop_end(self, reps=2):
        self.segs.append((self._loop_start, len(self.ins), reps))
        self._loop_start = None

    def trace(self):
        if self.custom is not None:
            tr = []
            for (a, b) in self.custom:
                tr += list(range(a, b))
            return tr
        tr = []
        pos = 0
        for (a, b, r) in self.segs:
            tr += list(range(pos, a))
            for _ in range(r):
                tr += list(range(a, b))
            pos = b
        tr += list(range(pos, len(self.ins)))
        return tr

    def pass_waitcnt(self):
        tr = self.trace()
        vm = []
        lg = []
        smem_pending = False
        smem_dst = set()
        for idx in tr:
            I = self.ins[idx]
            if I.kind == 'label':
                continue
            touched = set(I.rd) | set(I.wr)
            need_n = None
            for p, o in enumerate(vm):
                hit = bool(o['dst'] & touched) or (I.need and o['tag'] in I.need)
                if hit:
                    n = len(vm) - 1 - p
                    need_n = n if need_n is None else min(need_n, n)
            if I.kind == 'wait' and 'vmcnt(0)' in I.text:
                vm = []
            if I.kind in ('vm_ld', 'vm_st', 'vm_dma') and len(vm) >= 60:
                need_n = 56 if need_n is None else min(need_n, 56)
            if need_n is not None:
                need_n = min(need_n, 63)
                I.wait_vm = need_n if I.wait_vm is None else min(I.wait_vm, need_n)
                vm = vm[len(vm) - need_n:] if need_n > 0 else []
            need_l = None
            for p, o in enumerate(lg):
                if o['dst'] & touched:
                    n = len(lg) - 1 - p
                    need_l = n if need_l is None else min(need_l, n)
            if smem_pending and (smem_dst & touched):
                need_l = 0
            if I.kind == 'barrier':
                if any(o['wr'] for o in lg):
                    need_l = 0
            if I.kind == 'wait' and 'lgkmcnt(0)' in I.text:
                lg = []; smem_pending = False; smem_dst = set()
            if I.kind in ('ds_rd', 'ds_wr') and len(lg) >= 15:
                need_l = 12 if need_l is None else min(need_l, 12)
            if need_l is not None:
                if smem_pending:
                    need_l = 0
                need_l = min(need_l, 15)
                I.wait_lgkm = need_l if I.wait_lgkm is None else min(I.wait_lgkm, need_l)
                lg = lg[len(lg) - need_l:] if need_l > 0 else []
                if need_l == 0:
                    smem_pending = False; smem_dst = set()
            if I.kind in ('vm_ld', 'vm_st', 'vm_dma'):
                vm.append(dict(dst=set(I.wr), tag=I.tag))
            elif I.kind == 'ds_rd':
                lg.append(dict(dst=set(I.wr), wr=False))
            elif I.kind == 'ds_wr':
                lg.append(dict(dst=set(), wr=True))
            elif I.kind == 'smem':
                smem_pending = True; smem_dst |= set(I.wr)

    def materialize_waits(self):
        out = []
        idxmap = {}
        for i, I in enumerate(self.ins):
            idxmap[i] = len(out)
            if I.wait_vm is not None or I.wait_lgkm is not None:
                s = 's_waitcnt'
                if I.wait_vm is not None:
                    s += ' vmcnt(%d)' % I.wait_vm
                if I.wait_lgkm is not None:
                    s += ' lgkmcnt(%d)' % I.wait_lgkm
                out.append(Inst(s))
                I.wait_vm = I.wait_lgkm = None
            out.append(I)
        idxmap[len(self.ins)] = len(out)
        self.segs = [(idxmap[a], idxmap[b], r) for (a, b, r) in self.segs]
        if self.custom is not None:
            self.custom = [(idxmap[a], idxmap[b]) for (a, b) in self.custom]
        self.ins = out

    def verify_waits(self):
        tr = self.trace()
        vm = []; lg = []
        for idx in tr:
            I = self.ins[idx]
            if I.kind == 'label':
                continue
            if I.kind == 'wait':
                m = re.search(r'vmcnt\((\d+)\)', I.text)
                if m:
                    n = int(m.group(1)); vm = vm[len(vm) - n:] if n > 0 and n < len(vm) else (vm if n >= len(vm) else [])
                m = re.search(r'lgkmcnt\((\d+)\)', I.text)
                if m:
                    n = int(m.group(1)); lg = lg[len(lg) - n:] if n > 0 and n < len(lg) else (lg if n >= len(lg) else [])
                continue
            touched = set(I.rd) | set(I.wr)
            for o in vm:
                if (o['dst'] & touched) or (I.need and o['tag'] in I.need):
                    raise RuntimeError('uncovered vmem dependency at: ' + I.text)
            for o in lg:
                if o['dst'] & touched:
                    raise RuntimeError('uncovered lds dependency at: ' + I.text)
            if I.kind == 'barrier' and any(o['wr'] for o in lg):
                raise RuntimeError('lds write outstanding at barrier')
            if I.kind in ('vm_ld', 'vm_st', 'vm_dma'):
                vm.append(dict(dst=set(I.wr), tag=I.tag))
            elif I.kind == 'ds_rd':
                lg.append(dict(dst=set(I.wr), wr=False))
            elif I.kind == 'ds_wr':
                lg.append(dict(dst=set(), wr=True))
            if len(vm) > 63:
                raise RuntimeError('too many outstanding vmem ops')
            if len(lg) > 15:
                raise RuntimeError('too many outstanding lds ops (%d) at %s' % (len(lg), I.text))

    def pass_hazards(self):
        for it in range(50):
            tr = self.trace()
            pos = 0
            lastw = {}
            lastsrcc = {}
            laststore = {}
            changed = False
            add = {}
            for idx in tr:
                I = self.ins[idx]
                if I.kind == 'label':
                    continue
                pos += I.pre_nop
                need = 0

                def req(p0, ws):
                    have = pos - p0 - 1
                    return max(0, ws - have)
                k = I.kind
                isvalu = k in ('valu', 'trans', 'permlane', 'readlane')
                for r in I.rd:
                    w = lastw.get(r)
                    if w is None:
                        continue
                    p0, wk, wi = w
                    wvalu = wk in ('valu', 'trans', 'permlane', 'readlane')
                    if r[0] in ('v', 'a'):
                        if wvalu and k == 'mfma':
                            need = max(need, req(p0, 2))
                        if wk == 'mfma':
                            if k == 'mfma':
                                if r in I.srcc and wi.wr == I.srcc:
                                    pass
                                elif r in I.srcc and not (r in (set(I.rd) - set(I.srcc))):
                                    need = max(need, req(p0, 6))
                                else:
                                    need = max(need, req(p0, 8))
                            else:
                                need = max(need, req(p0, 8))
                        if wk == 'trans' and isvalu and k != 'trans':
                            need = max(need, req(p0, 1))
                        if wk == 'trans' and k == 'trans':
                            need = max(need, req(p0, 1))
                        if wvalu and k == 'permlane':
                            need = max(need, req(p0, 2))
                        if wvalu and k == 'readlane':
                            need = max(need, req(p0, 1))
                    if r[0] in ('s', 'vcc'):
                        if wvalu:
                            if isvalu:
                                need = max(need, req(p0, 2))
                            elif k in ('vm_ld', 'vm_st', 'vm_dma'):
                                need = max(need, req(p0, 5))
                            else:
                                need = max(need, req(p0, 4))
                    if r[0] == 'm0' and wk == 'salu' and k == 'vm_dma':
                        need = max(need, req(p0, 1))
                for r in I.wr:
                    w = lastw.get(r)
                    if w is not None:
                        p0, wk, wi = w
                        if wk == 'mfma' and k != 'mfma':
                            need = max(need, req(p0, 8))
                        if wk == 'mfma' and k == 'mfma' and not (wi.wr == I.wr):
                            need = max(need, req(p0, 8))
                    if isvalu and r in lastsrcc:
                        need = max(need, req(lastsrcc[r], 3))
                    if r in laststore:
                        need = max(need, req(laststore[r], 2))
                if need > 0:
                    add[idx] = max(add.get(idx, 0), need)
                    pos += need
                for r in I.wr:
                    lastw[r] = (pos, k, I)
                if k == 'mfma':
                    for r in I.srcc:
                        lastsrcc[r] = pos
                if k == 'vm_st':
                    for r in I.srcc:
                        laststore[r] = pos
                pos += I.nstates()
            if not add:
                return
            for idx, n in add.items():
                self.ins[idx].pre_nop += n
        raise RuntimeError('hazard pass did not converge')

    def render(self):
        out = []
        for I in self.ins:
            n = I.pre_nop
            while n > 0:
                c = min(n, 16)
                out.append('    s_nop %d' % (c - 1))
                n -= c
            if I.kind == 'label':
                out.append(I.text)
            else:
                out.append('    ' + I.text + (('  ; ' + I.comment) if I.comment else ''))
        return '\n'.join(out) + '\n'

    def finalize(self):
        self.pass_waitcnt()
        self.materialize_waits()
        for _ in range(5):
            n0 = len(self.ins)
            self.pass_waitcnt_explicit()
            self.materialize_waits()
            if len(self.ins) == n0:
                break
        self.verify_waits()
        self.pass_hazards()
        return self.render()

    def pass_waitcnt_explicit(self):
        tr = self.trace()
        vm = []; lg = []
        for idx in tr:
            I = self.ins[idx]
            if I.kind == 'label':
                continue
            if I.kind == 'wait':
                m = re.search(r'vmcnt\((\d+)\)', I.text)
                if m:
                    n = int(m.group(1))
                    if n < len(vm):
                        vm = vm[len(vm) - n:] if n > 0 else []
                m = re.search(r'lgkmcnt\((\d+)\)', I.text)
                if m:
                    n = int(m.group(1))
                    if n < len(lg):
                        lg = lg[len(lg) - n:] if n > 0 else []
                continue
            touched = set(I.rd) | set(I.wr)
            need_n = None
            for p, o in enumerate(vm):
                if (o['dst'] & touched) or (I.need and o['tag'] in I.need):
                    n = len(vm) - 1 - p
                    need_n = n if need_n is None else min(need_n, n)
            if I.kind in ('vm_ld', 'vm_st', 'vm_dma') and len(vm) >= 60:
                need_n = 56 if need_n is None else min(need_n, 56)
            if need_n is not None:
                need_n = min(need_n, 63)
                I.wait_vm = need_n if I.wait_vm is None else min(I.wait_vm, need_n)
                vm = vm[len(vm) - need_n:] if need_n > 0 else []
            need_l = None
            for p, o in enumerate(lg):
                if o['dst'] & touched:
                    n = len(lg) - 1 - p
                    need_l = n if need_l is None else min(need_l, n)
            if I.kind == 'barrier' and any(o['wr'] for o in lg):
                need_l = 0
            if I.kind in ('ds_rd', 'ds_wr') and len(lg) >= 15:
                need_l = 12 if need_l is None else min(need_l, 12)
            if need_l is not None:
                need_l = min(need_l, 15)
                I.wait_lgkm = need_l if I.wait_lgkm is None else min(I.wait_lgkm, need_l)
                lg = lg[len(lg) - need_l:] if need_l > 0 else []
            if I.kind in ('vm_ld', 'vm_st', 'vm_dma'):
                vm.append(dict(dst=set(I.wr), tag=I.tag))
            elif I.kind == 'ds_rd':
                lg.append(dict(dst=set(I.wr), wr=False))
            elif I.kind == 'ds_wr':
                lg.append(dict(dst=set(), wr=True))


def interleave(mf, fill, lead=0):
    out = []
    nm = len(mf)
    nf = len(fill)
    fi = 0
    for i, m in enumerate(mf):
        out.append(m)
        tgt = (nf * (i + 1) + nm - 1) // nm if nm else nf
        while fi < min(tgt, nf):
            out.append(fill[fi]); fi += 1
    while fi < nf:
        out.append(fill[fi]); fi += 1
    return out
```

```python
import math
from asmfw import Prog

X_BYTES = 8 * 192 * 640 * 2
KV_BYTES = 8 * 32 * 512 * 192 * 2
WQ_BYTES = 640 * 6144 * 2
WS_O_BYTES = 2 * 96 * 192 * 1024
TILE = 24576
RING = 6
LDS1 = TILE * RING
LOOKAHEAD = 5
SPREAD = 5
RS = 12

V_LANE = 1
V_GKV = 4
V_GW = 216
V_XOFF = 10
V_OOFF = 13
V_BP = 222
V_TOUCH = 223
V_DUMMY = 224
V_TOUCH2 = 240
TOUCH = False
PRETOUCH = True
ROT = False
PEEL = False
NT = True
V_KP = 14
V_VP = 16
V_WP = 20
V_KW = 24
V_VW = 26
V_MC = 30
V_L = 33
V_CM = 36
V_T = 39
V_S = [48, 96]
V_P = 144
V_A = 168
A_Q = 144

S_SLOT = 60
S_WOFF = 66
S_C = 70
S_THR = 71


def f32bits(x):
    import struct
    return struct.unpack('<I', struct.pack('<f', x))[0]


def gen_k1(name):
    p = Prog()
    e = p.emit
    e(name + ':')
    e('s_cmp_ge_u32 s2, 256')
    e('s_cbranch_scc1 L1_end')
    e('s_load_dwordx16 s[4:19], s[0:1], 0')
    e('s_load_dwordx4 s[20:23], s[0:1], 64')
    e('s_load_dwordx2 s[24:25], s[0:1], 96')
    e('s_and_b32 s67, s2, 7')
    e('s_lshr_b32 s68, s2, 3')
    e('s_lshr_b32 s52, s67, 2')
    e('s_and_b32 s67, s67, 3')
    e('s_lshl_b32 s67, s67, 2')
    e('s_lshr_b32 s69, s68, 3')
    e('s_add_u32 s67, s67, s69')
    e('s_lshl_b32 s54, s67, 1')
    e('s_and_b32 s53, s68, 7')
    e('v_lshrrev_b32 v2, 6, v0')
    e('v_and_b32 v%d, 63, v0' % V_LANE)
    e('v_readfirstlane_b32 s55, v2')
    e('s_mul_i32 s%d, s55, 6144' % S_WOFF)
    mk0 = len(p.ins)
    e('s_waitcnt lgkmcnt(0)')
    e('s_cmp_eq_u32 s52, 0')
    for (dst, a, b_, sz) in ((28, 4, 14, X_BYTES), (32, 10, 20, WQ_BYTES), (36, 10, 20, WQ_BYTES),
                             (40, 6, 16, KV_BYTES), (44, 8, 18, KV_BYTES)):
        e('s_cselect_b32 s%d, s%d, s%d' % (dst, a, b_))
        e('s_cselect_b32 s%d, s%d, s%d' % (dst + 1, a + 1, b_ + 1))
        e('s_mov_b32 s%d, %d' % (dst + 2, sz))
        e('s_mov_b32 s%d, 0x00020000' % (dst + 3))
    e('s_mov_b32 s48, s24')
    e('s_mov_b32 s49, s25')
    e('s_mov_b32 s50, %d' % WS_O_BYTES)
    e('s_mov_b32 s51, 0x00020000')
    e('s_cmp_eq_u32 s52, 0')
    e('s_cselect_b32 s24, s12, s22')
    e('s_cselect_b32 s25, s13, s23')
    e('s_mov_b32 s26, 0')
    e('s_mov_b32 s27, 0x00020000')
    e('s_and_b32 s77, s2, 3')
    e('s_mul_i32 s77, s77, 1966080')
    e('s_lshr_b32 s68, s2, 3')
    e('s_lshl_b32 s68, s68, 2')
    e('s_add_u32 s68, s68, s55')
    e('s_mul_i32 s68, s68, 15360')
    e('s_add_u32 s77, s77, s68')
    e('s_lshl_b32 s56, s53, 5')
    e('s_add_u32 s56, s56, s54')
    e('s_mul_i32 s56, s56, 196608')
    e('s_mul_i32 s57, s54, 384')
    e('s_mul_i32 s58, s53, 245760')
    e('s_mul_i32 s59, s52, 96')
    e('s_mul_i32 s67, s53, 12')
    e('s_add_u32 s59, s59, s67')
    e('s_mul_i32 s67, s55, 3')
    e('s_add_u32 s59, s59, s67')
    e('s_mul_i32 s59, s59, 192')
    e('s_mul_i32 s67, s54, 6')
    e('s_add_u32 s59, s59, s67')
    e('s_lshl_b32 s59, s59, 10')
    for k in range(RING):
        e('s_mov_b32 s%d, %d' % (S_SLOT + k, k * TILE))
    if ROT:
        e('s_lshr_b32 s67, s2, 3')
        e('s_add_u32 s67, s67, s2')
        for k in range(8):
            e('s_add_u32 s68, s67, %d' % k)
            e('s_and_b32 s68, s68, 7')
            e('s_mul_i32 s%d, s68, %d' % (86 + k, TILE))
    cs = (192.0 ** -0.5) * math.log2(math.e)
    e('s_mov_b32 s%d, 0x%08x' % (S_C, f32bits(cs)))
    e('s_mov_b32 s%d, 0x%08x' % (S_THR, f32bits(8.0)))
    e('s_getpc_b64 s[74:75]')
    e('L1_pc:')
    e('s_add_u32 s74, s74, L1_rescale-L1_pc')
    e('s_addc_u32 s75, s75, 0')
    L = V_LANE
    mk1 = len(p.ins)
    e('v_lshrrev_b32 v2, 4, v%d' % L)
    e('v_and_b32 v3, 15, v%d' % L)
    for j in range(3):
        e('v_add_u32 v40, %d, v%d' % (j * 64, L))
        e('v_mul_u32_u24 v41, 2731, v40')
        e('v_lshrrev_b32 v41, 16, v41')
        e('v_mul_u32_u24 v42, 24, v41')
        e('v_sub_u32 v42, v40, v42')
        e('v_xor_b32 v43, v42, v41')
        e('v_and_b32 v43, 7, v43')
        e('v_and_b32 v44, 24, v42')
        e('v_or_b32 v43, v43, v44')
        e('v_mul_u32_u24 v45, 384, v41')
        e('v_lshl_add_u32 v45, v43, 4, v45')
        e('v_add_u32 v45, s%d, v45' % S_WOFF)
        if j:
            e('v_subrev_u32 v45, %d, v45' % (j * 1024))
        e('v_mov_b32 v%d, v45' % (V_GKV + j))
        for half in range(2):
            e('v_and_b32 v43, 2, v41')
            if half:
                e('v_or_b32 v43, 4, v43')
            e('v_xor_b32 v43, v42, v43')
            e('v_and_b32 v43, 7, v43')
            e('v_or_b32 v43, v43, v44')
            e('s_lshl_b32 s67, s55, 4')
            e('v_add_u32 v45, %d, v41' % (half * 8))
            e('v_add_u32 v45, s67, v45')
            e('v_mul_u32_u24 v45, 12288, v45')
            e('v_lshl_add_u32 v45, v43, 4, v45')
            if j:
                e('v_subrev_u32 v45, %d, v45' % (j * 1024))
            e('v_mov_b32 v%d, v45' % (V_GW + half * 3 + j))
    e('s_mul_i32 s67, s55, 48')
    e('v_lshrrev_b32 v40, 2, v%d' % L)
    e('v_add_u32 v40, s67, v40')
    e('v_mul_u32_u24 v40, 1280, v40')
    e('v_and_b32 v41, 3, v%d' % L)
    e('v_lshl_add_u32 v%d, v41, 4, v40' % V_XOFF)
    e('v_lshl_add_u32 v40, v3, 2, v2')
    e('v_lshlrev_b32 v%d, 2, v40' % V_BP)
    e('v_add_u32 v%d, %d, v%d' % (V_XOFF + 1, 16 * 1280, V_XOFF))
    e('v_add_u32 v%d, %d, v%d' % (V_XOFF + 2, 32 * 1280, V_XOFF))
    e('v_lshlrev_b32 v%d, 4, v%d' % (V_OOFF, L))
    e('s_lshl_b32 s67, s55, 12')
    e('v_lshlrev_b32 v40, 6, v%d' % L)
    e('v_add_u32 v%d, s67, v40' % V_TOUCH)
    e('v_mov_b32 v%d, v40' % V_TOUCH2)
    mk2 = len(p.ins)
    e('v_and_b32 v40, 7, v%d' % L)
    e('v_xor_b32 v40, v40, v2')
    e('v_mul_u32_u24 v41, 384, v3')
    e('v_lshl_add_u32 v%d, v40, 4, v41' % V_KP)
    e('v_xor_b32 v%d, 64, v%d' % (V_KP + 1, V_KP))
    e('v_lshrrev_b32 v40, 2, v3')
    e('v_lshl_add_u32 v40, v2, 2, v40')
    e('v_and_b32 v41, 7, v40')
    e('v_bfe_u32 v42, v3, 1, 1')
    e('v_xor_b32 v41, v41, v42')
    e('v_mul_u32_u24 v40, 384, v40')
    e('v_and_b32 v43, 1, v3')
    e('v_lshl_add_u32 v40, v43, 3, v40')
    for j in range(4):
        e('v_xor_b32 v44, %d, v41' % (2 * j))
        e('v_lshl_add_u32 v%d, v44, 4, v40' % (V_VP + j))
    e('v_lshrrev_b32 v40, 2, v3')
    e('v_lshl_add_u32 v40, v2, 3, v40')
    e('v_bfe_u32 v41, v3, 3, 1')
    e('v_lshlrev_b32 v41, 1, v41')
    e('v_and_b32 v44, 1, v2')
    e('v_lshl_or_b32 v41, v44, 2, v41')
    e('v_xor_b32 v41, v41, v42')
    e('v_mul_u32_u24 v40, 384, v40')
    e('v_lshl_add_u32 v40, v43, 3, v40')
    for j in range(4):
        e('v_xor_b32 v44, %d, v41' % (2 * j))
        e('v_lshl_add_u32 v%d, v44, 4, v40' % (V_WP + j))

    mk3 = len(p.ins)
    blk_srd = p.ins[mk0:mk1]
    blk_pat = p.ins[mk1:mk2]
    blk_rest = p.ins[mk2:mk3]
    p.ins = p.ins[:mk0] + blk_pat + blk_srd
    tiles = [('W', t) for t in range(10)] + [('K', 0)]
    for c in range(7):
        tiles += [('K', c + 1), ('V', c)]
    tiles += [('V', 7)]
    NT = len(tiles)
    tindex = {t: i for i, t in enumerate(tiles)}

    def dma(ti):
        nxt = ti >= NT
        kind, idx = tiles[ti % NT]
        slot = S_SLOT + (ti % RING)
        tag = 'T%d' % (ti % NT)
        out = []
        o = lambda s, **kw: out.append((s, kw))
        o('s_add_u32 m0, s%d, s%d' % (slot, S_WOFF))
        if kind == 'W':
            srd = 36 if nxt else 32
            off = idx * 64 * 12288 + (384 if nxt else 0)
            o('s_add_u32 s67, s57, %d' % off)
            for j in range(3):
                o('buffer_load_dwordx4 v%d, s[%d:%d], s67 offen offset:%d lds' % (V_GW + j, srd, srd + 3, j * 1024), tag=tag)
            o('s_add_u32 m0, m0, 3072')
            for j in range(3):
                o('buffer_load_dwordx4 v%d, s[%d:%d], s67 offen offset:%d lds' % (V_GW + 3 + j, srd, srd + 3, j * 1024), tag=tag)
        else:
            assert not nxt
            srd = 40 if kind == 'K' else 44
            if ROT:
                o('s_add_u32 s67, s56, s%d' % (86 + idx))
            else:
                o('s_add_u32 s67, s56, %d' % (idx * TILE))
            for j in range(3):
                o('buffer_load_dwordx4 v%d, s[%d:%d], s67 offen offset:%d %slds' % (V_GKV + j, srd, srd + 3, j * 1024, 'nt ' if NT else ''), tag=tag)
            o('s_add_u32 m0, m0, 3072')
            o('s_add_u32 s67, s67, 3072')
            for j in range(3):
                o('buffer_load_dwordx4 v%d, s[%d:%d], s67 offen offset:%d %slds' % (V_GKV + j, srd, srd + 3, j * 1024, 'nt ' if NT else ''), tag=tag)
        return out

    def xloads(t):
        out = []
        for ks in range(2):
            for qb in range(3):
                r = V_S[0] + (t % 4) * 24 + (ks * 3 + qb) * 4
                out.append(('buffer_load_dwordx4 v[%d:%d], v%d, s[28:31], s58 offen offset:%d' %
                            (r, r + 3, V_XOFF + qb, (t * 2 + ks) * 64), {}))
        return out

    def xperm(t):
        out = []
        for f in range(6):
            r = V_S[0] + (t % 4) * 24 + f * 4
            for q in range(4):
                out.append(('ds_bpermute_b32 v%d, v%d, v%d' % (r + q, V_BP, r + q), {}))
        return out

    pend = []
    spread = [False]

    def enter_tile(ti):
        kind, idx = tiles[ti % NT]
        slot = S_SLOT + (ti % RING)
        out = [('s_barrier', dict(need=['T%d' % (ti % NT)]))]
        if kind == 'K':
            for j in range(2):
                out.append(('v_add_u32 v%d, s%d, v%d' % (V_KW + j, slot, V_KP + j), {}))
        else:
            src = V_VP if kind == 'V' else V_WP
            for j in range(4):
                out.append(('v_add_u32 v%d, s%d, v%d' % (V_VW + j, slot, src + j), {}))
        if spread[0]:
            grp = []
            for it in dma(ti + 4):
                grp.append(it)
                if it[0].startswith('buffer_load'):
                    pend.append(grp); grp = []
        else:
            out += dma(ti + 4)
        return out

    frags = []

    def add_frag(ti, reads, mf):
        frags.append(dict(tile=ti, reads=reads, mf=mf, fill=[], hard_before=[]))

    phase_start = {}

    def acc(db, qb):
        c = (db * 3 + qb) * 4
        return 'a[%d:%d]' % (c, c + 3)

    for t in range(10):
        ti = tindex[('W', t)]
        phase_start[('QP', t)] = len(frags)
        for ks in range(2):
            for dqb in range(12):
                off = (dqb >> 2) * 128 + ks * 12288
                b = V_VW + (dqb & 3)
                reads = [('ds_read_b64_tr_b16', 0, b, off), ('ds_read_b64_tr_b16', 2, b, off + 1536)]
                mf = []
                for qb in range(3):
                    xr = V_S[0] + (t % 4) * 24 + (ks * 3 + qb) * 4
                    src = '0' if (t == 0 and ks == 0) else acc(dqb, qb)
                    mf.append((acc(dqb, qb), 'v[%d:%d]' % (xr, xr + 3), src))
                add_frag(ti, reads, mf)

    def add_qk(c):
        ti = tindex[('K', c)]
        sb = V_S[c % 2]
        for kb in range(4):
            for ds in range(6):
                off = kb * 6144 + (ds >> 1) * 128
                reads = [('ds_read_b128', 0, V_KW + (ds & 1), off)]
                mf = []
                for qb in range(3):
                    d = sb + (kb * 3 + qb) * 4
                    q = A_Q + (ds * 3 + qb) * 4
                    dst = 'v[%d:%d]' % (d, d + 3)
                    mf.append((dst, 'a[%d:%d]' % (q, q + 3), '0' if ds == 0 else dst))
                add_frag(ti, reads, mf)

    def add_pv(c):
        ti = tindex[('V', c)]
        for ks in range(2):
            for db in range(12):
                off = (db >> 2) * 128 + ks * 12288
                b = V_VW + (db & 3)
                reads = [('ds_read_b64_tr_b16', 0, b, off), ('ds_read_b64_tr_b16', 2, b, off + 6144)]
                mf = []
                for qb in range(3):
                    pr = V_P + (ks * 3 + qb) * 4
                    src = '0' if (c == 0 and ks == 0) else acc(db, qb)
                    mf.append((acc(db, qb), 'v[%d:%d]' % (pr, pr + 3), src))
                add_frag(ti, reads, mf)

    phase_start[('A', -1)] = len(frags)
    add_qk(0)
    for c in range(8):
        phase_start[('A', c)] = len(frags)
        if c < 7:
            add_qk(c + 1)
        phase_start[('B', c)] = len(frags)
        add_pv(c)
    NF = len(frags)
    assert NF % RS == 0, NF
    phase_start['END'] = NF

    def maxtree(c, dst):
        sb = V_S[c % 2]
        out = []
        for step in range(8):
            for qb in range(3):
                regs = [sb + (kb * 3 + qb) * 4 + r for kb in range(4) for r in range(4)]
                if step == 0:
                    out.append(('v_max3_f32 v%d, v%d, v%d, v%d' % (dst + qb, regs[0], regs[1], regs[2]), {}))
                elif step < 7:
                    out.append(('v_max3_f32 v%d, v%d, v%d, v%d' % (dst + qb, dst + qb, regs[2 * step + 1], regs[2 * step + 2]), {}))
                else:
                    out.append(('v_max_f32 v%d, v%d, v%d' % (dst + qb, dst + qb, regs[15]), {}))
        return out

    def xlane(op, src, tmp):
        out = []
        for sw in ('v_permlane16_swap_b32', 'v_permlane32_swap_b32'):
            for qb in range(3):
                out.append(('v_mov_b32 v%d, v%d' % (tmp + qb, src + qb), {}))
            for qb in range(3):
                out.append(('%s v%d, v%d' % (sw, src + qb, tmp + qb), {}))
            for qb in range(3):
                out.append(('%s v%d, v%d, v%d' % (op, src + qb, src + qb, tmp + qb), {}))
        return out

    def exps(c):
        sb = V_S[c % 2]
        out = []
        for kb in range(4):
            for qb in range(3):
                base = sb + (kb * 3 + qb) * 4
                for r in range(4):
                    out.append(('v_fma_f32 v%d, v%d, s%d, -v%d' % (base + r, base + r, S_C, V_MC + qb), {}))
                for r in range(4):
                    out.append(('v_exp_f32 v%d, v%d' % (base + r, base + r), {}))
            if kb >= 1:
                out += cvts(c, kb - 1)
        out += cvts(c, 3)
        return out

    def cvts(c, kb):
        sb = V_S[c % 2]
        out = []
        for qb in range(3):
            base = sb + (kb * 3 + qb) * 4
            pr = V_P + ((kb >> 1) * 3 + qb) * 4 + (kb & 1) * 2
            out.append(('v_cvt_pk_bf16_f32 v%d, v%d, v%d' % (pr, base, base + 1), {}))
            out.append(('v_cvt_pk_bf16_f32 v%d, v%d, v%d' % (pr + 1, base + 2, base + 3), {}))
        return out

    def sums(c):
        sb = V_S[c % 2]
        out = []
        for kb in range(4):
            for r in range(4):
                for qb in range(3):
                    reg = sb + (kb * 3 + qb) * 4 + r
                    if c == 0 and kb == 0 and r == 0:
                        out.append(('v_mov_b32 v%d, v%d' % (V_L + qb, reg), {}))
                    else:
                        out.append(('v_add_f32 v%d, v%d, v%d' % (V_L + qb, V_L + qb, reg), {}))
        return out

    def check():
        out = []
        for qb in range(3):
            out.append(('v_fma_f32 v%d, v%d, s%d, -v%d' % (V_T + qb, V_CM + qb, S_C, V_MC + qb), {}))
        out.append(('v_max3_f32 v%d, v%d, v%d, v%d' % (V_T, V_T, V_T + 1, V_T + 2), {}))
        out.append(('v_cmp_lt_f32 s[78:79], s%d, v%d' % (S_THR, V_T), {}))
        return out

    phase_fill = {}
    hard = {}

    qconv = []
    for j in range(6):
        for qb in range(3):
            t0 = V_S[1] + ((j * 3 + qb) % 4) * 12
            for h2 in range(2):
                c0 = ((2 * j + h2) * 3 + qb) * 4
                for r in range(4):
                    qconv.append(('v_accvgpr_read_b32 v%d, a%d' % (t0 + h2 * 4 + r, c0 + r), {}))
            X = t0 + 8
            qconv.append(('v_cvt_pk_bf16_f32 v%d, v%d, v%d' % (X, t0, t0 + 1), {}))
            qconv.append(('v_cvt_pk_bf16_f32 v%d, v%d, v%d' % (X + 1, t0 + 2, t0 + 3), {}))
            qconv.append(('v_cvt_pk_bf16_f32 v%d, v%d, v%d' % (X + 2, t0 + 4, t0 + 5), {}))
            qconv.append(('v_cvt_pk_bf16_f32 v%d, v%d, v%d' % (X + 3, t0 + 6, t0 + 7), {}))
            qconv.append(('v_permlane32_swap_b32 v%d, v%d' % (X, X + 2), {}))
            qconv.append(('v_permlane32_swap_b32 v%d, v%d' % (X + 1, X + 3), {}))
            qconv.append(('v_permlane16_swap_b32 v%d, v%d' % (X, X + 2), {}))
            qconv.append(('v_permlane16_swap_b32 v%d, v%d' % (X + 1, X + 3), {}))
            q = A_Q + (j * 3 + qb) * 4
            for r in range(4):
                qconv.append(('v_accvgpr_write_b32 a%d, v%d' % (q + r, X + r), {}))
    hard[phase_start[('A', -1)]] = qconv

    for t in range(9):
        phase_fill[('QP', t)] = xperm(t + 1)
    hard[phase_start[('QP', 0)]] = xperm(0)
    for c in range(8):
        fa = []
        if c == 0:
            fa += maxtree(0, V_CM) + xlane('v_max_f32', V_CM, V_T)
            for qb in range(3):
                fa.append(('v_mul_f32 v%d, s%d, v%d' % (V_MC + qb, S_C, V_CM + qb), {}))
        fa += exps(c)
        phase_fill[('A', c)] = fa
        fb = sums(c)
        if c < 7:
            fb = fb[:24] + maxtree(c + 1, V_CM) + fb[24:] + check()
        phase_fill[('B', c)] = fb

    def emit_list(lst):
        for (s, kw) in lst:
            e(s, **kw)

    def frag_reads(fi, nxt_iter=False):
        f = frags[fi % NF]
        out = []
        ti = f['tile'] + (NT if fi >= NF else 0)
        if fi % NF == 0 or frags[(fi % NF) - 1]['tile'] != f['tile']:
            out += enter_tile(ti)
        r = V_A + (fi % RS) * 4
        for (op, ro, base, off) in f['reads']:
            if op == 'ds_read_b128':
                out.append(('ds_read_b128 v[%d:%d], v%d offset:%d' % (r, r + 3, base, off), {}))
            else:
                out.append(('%s v[%d:%d], v%d offset:%d' % (op, r + ro, r + ro + 1, base, off), {}))
        return out

    emit_list(dma(0))
    emit_list(xloads(0))
    touch_groups = []
    if PRETOUCH:
        e('s_lshl_b32 s82, s53, 2')
        e('s_add_u32 s82, s82, s55')
        e('s_mul_i32 s82, s82, %d' % (20 * 12288))
        e('s_add_u32 s82, s82, s57')
        e('s_lshr_b32 s83, s2, 6')
        e('s_lshl_b32 s83, s83, 2')
        e('s_add_u32 s83, s83, s55')
        e('s_mul_i32 s83, s83, %d' % (12 * 1280))
        e('s_add_u32 s83, s83, s58')
        for n in range(4):
            e('v_add_u32 v40, %d, v%d' % (n * 64, V_LANE))
            e('v_min_u32 v40, 239, v40')
            e('v_mul_u32_u24 v41, 5462, v40')
            e('v_lshrrev_b32 v41, 16, v41')
            e('v_mul_u32_u24 v42, 12, v41')
            e('v_sub_u32 v42, v40, v42')
            e('v_mul_u32_u24 v41, 12288, v41')
            e('v_lshl_add_u32 v%d, v42, 6, v41' % (241 + n))
            touch_groups.append([('buffer_load_dword v%d, v%d, s[32:35], s82 offen' % (V_DUMMY + n, 241 + n), {})])
            e('v_mul_u32_u24 v41, 3277, v40')
            e('v_lshrrev_b32 v41, 16, v41')
            e('v_mul_u32_u24 v42, 20, v41')
            e('v_sub_u32 v42, v40, v42')
            e('v_mul_u32_u24 v41, 1280, v41')
            e('v_lshl_add_u32 v%d, v42, 6, v41' % (245 + n))
            touch_groups.append([('buffer_load_dword v%d, v%d, s[28:31], s83 offen' % (V_DUMMY + 4 + n, 245 + n), {})])
    p.ins += blk_rest
    spread[0] = True

    def groups_of(lst):
        gs, grp = [], []
        for it in lst:
            grp.append(it)
            if it[0].startswith('buffer_load'):
                gs.append(grp); grp = []
        return gs
    if PEEL:
        for ti in range(1, 4):
            pend.extend(groups_of(dma(ti)))
            pend.extend([[it] for it in xloads(ti)])
        pend.extend(touch_groups)
    else:
        for ti in range(1, 4):
            emit_list(dma(ti))
        for ti in range(1, 4):
            emit_list(xloads(ti))
        for g in touch_groups:
            emit_list(g)
        spread[0] = False
    for fi in range(LOOKAHEAD):
        emit_list(frag_reads(fi))
    spread[0] = True
    e('s_mov_b32 s76, 0')
    e('s_mov_b32 s38, %d' % WQ_BYTES)

    order = [('QP', t) for t in range(10)] + [('A', -1)]
    for c in range(8):
        order += [('A', c), ('B', c)]
    gcount = [0]

    def emit_phase(pi, peeled=False):
        ph = order[pi]
        a = phase_start[ph]
        b_ = phase_start[order[pi + 1]] if pi + 1 < len(order) else NF
        fill = phase_fill.get(ph, [])
        if a in hard:
            emit_list(hard[a])
        if ph[0] == 'QP' and 1 <= ph[1] and ph[1] + 3 < 10:
            for it in xloads(ph[1] + 3):
                pend.append([it])
        if ph == ('A', 6):
            for n in range(4):
                pend.append([('buffer_load_dword v%d, v%d, s[24:27], s77 offen offset:%d' % (V_DUMMY + n, V_TOUCH2, 0), {}),
                             ('s_add_u32 s77, s77, 4096', {})])
        nm = (b_ - a) * 3
        fi_done = 0
        mcount = 0
        for fi in range(a, b_):
            emit_list(frag_reads(fi + LOOKAHEAD))
            r = V_A + (fi % RS) * 4
            for (dst, bsrc, csrc) in frags[fi]['mf']:
                e('v_mfma_f32_16x16x32_bf16 %s, v[%d:%d], %s, %s' % (dst, r, r + 3, bsrc, csrc))
                mcount += 1
                gcount[0] += 1
                if pend and (peeled or gcount[0] % SPREAD == 0):
                    emit_list(pend.pop(0))
                if peeled:
                    tgt = 0 if mcount < 48 else (len(fill) * (mcount - 47) + 24) // 25
                    tgt = min(tgt, len(fill))
                else:
                    tgt = (len(fill) * mcount + nm - 1) // nm
                while fi_done < tgt:
                    s_, kw = fill[fi_done]
                    e(s_, **kw)
                    fi_done += 1
        while fi_done < len(fill):
            s_, kw = fill[fi_done]
            e(s_, **kw)
            fi_done += 1
        if pi == 0:
            while pend:
                emit_list(pend.pop(0))
        if ph[0] == 'B' and ph[1] < 7:
            e('s_cmp_lg_u64 s[78:79], 0')
            e('s_cbranch_scc0 L1_skip%d' % ph[1])
            e('s_swappc_b64 s[72:73], s[74:75]')
            e('L1_skip%d:' % ph[1])

    if PEEL:
        emit_phase(0, peeled=True)
        e('s_branch L1_qp1')
    i_head = len(p.ins)
    e('L1_head:')
    e('s_cmp_eq_u32 s76, 1')
    e('s_cselect_b32 s38, 0, %d' % WQ_BYTES)
    e('s_cselect_b32 s26, %d, 0' % WQ_BYTES)
    emit_phase(0)
    i_qp1 = len(p.ins)
    e('L1_qp1:')
    for pi in range(1, len(order)):
        emit_phase(pi)
    while pend:
        emit_list(pend.pop(0))
    for t in range(4):
        emit_list(xloads(t))
    emit_list(xlane('v_add_f32', V_L, V_T))
    for qb in range(3):
        e('v_rcp_f32 v%d, v%d' % (V_T + 3 + qb, V_L + qb))
    TMP = 144
    n = 0
    for j in range(6):
        for qb in range(3):
            t0 = TMP + (n % 2) * 12
            n += 1
            for h2 in range(2):
                c0 = ((2 * j + h2) * 3 + qb) * 4
                for r in range(4):
                    e('v_accvgpr_read_b32 v%d, a%d' % (t0 + h2 * 4 + r, c0 + r))
            for r in range(8):
                e('v_mul_f32 v%d, v%d, v%d' % (t0 + r, t0 + r, V_T + 3 + qb))
            X = t0 + 8
            e('v_cvt_pk_bf16_f32 v%d, v%d, v%d' % (X, t0, t0 + 1))
            e('v_cvt_pk_bf16_f32 v%d, v%d, v%d' % (X + 1, t0 + 2, t0 + 3))
            e('v_cvt_pk_bf16_f32 v%d, v%d, v%d' % (X + 2, t0 + 4, t0 + 5))
            e('v_cvt_pk_bf16_f32 v%d, v%d, v%d' % (X + 3, t0 + 6, t0 + 7))
            e('v_permlane32_swap_b32 v%d, v%d' % (X, X + 2))
            e('v_permlane32_swap_b32 v%d, v%d' % (X + 1, X + 3))
            e('v_permlane16_swap_b32 v%d, v%d' % (X, X + 2))
            e('v_permlane16_swap_b32 v%d, v%d' % (X + 1, X + 3))
            e('s_add_u32 s67, s59, %d' % (qb * 196608 + j * 1024))
            e('buffer_store_dwordx4 v[%d:%d], v%d, s[48:51], s67 offen' % (X, X + 3, V_OOFF))
    e('s_sub_u32 s77, s77, 16384')
    e('s_add_u32 s56, s56, 196608')
    e('s_add_u32 s57, s57, 384')
    e('s_add_u32 s59, s59, 6144')
    rot = NT % RING
    tmp = [80 + k for k in range(RING)]
    for k in range(RING):
        e('s_mov_b32 s%d, s%d' % (tmp[k], S_SLOT + (k + rot) % RING))
    for k in range(RING):
        e('s_mov_b32 s%d, s%d' % (S_SLOT + k, tmp[k]))
    e('s_add_u32 s76, s76, 1')
    e('s_cmp_lt_u32 s76, 2')
    e('s_cbranch_scc1 L1_head')
    i_end = len(p.ins)
    e('L1_end:')
    e('s_endpgm')
    if PEEL:
        p.custom = [(0, i_head), (i_qp1, i_end), (i_head, i_end), (i_end, len(p.ins))]
    else:
        p.custom = [(0, i_end), (i_head, i_end), (i_end, len(p.ins))]
    body = p.finalize()

    r = []
    o = r.append
    o('L1_rescale:')
    o('    s_nop 15')
    for sw in ('v_permlane16_swap_b32', 'v_permlane32_swap_b32'):
        for qb in range(3):
            o('    v_mov_b32 v%d, v%d' % (V_T + qb, V_CM + qb))
        o('    s_nop 1')
        for qb in range(3):
            o('    %s v%d, v%d' % (sw, V_CM + qb, V_T + qb))
        o('    s_nop 1')
        for qb in range(3):
            o('    v_max_f32 v%d, v%d, v%d' % (V_CM + qb, V_CM + qb, V_T + qb))
        o('    s_nop 1')
    for qb in range(3):
        o('    v_mul_f32 v%d, s%d, v%d' % (V_T + qb, S_C, V_CM + qb))
    for qb in range(3):
        o('    v_max_f32 v%d, v%d, v%d' % (V_T + qb, V_T + qb, V_MC + qb))
    for qb in range(3):
        o('    v_sub_f32 v%d, v%d, v%d' % (V_T + 3 + qb, V_MC + qb, V_T + qb))
    for qb in range(3):
        o('    v_exp_f32 v%d, v%d' % (V_T + 3 + qb, V_T + 3 + qb))
    for qb in range(3):
        o('    v_mov_b32 v%d, v%d' % (V_MC + qb, V_T + qb))
    o('    s_nop 1')
    for qb in range(3):
        o('    v_mul_f32 v%d, v%d, v%d' % (V_L + qb, V_L + qb, V_T + 3 + qb))
    for db in range(12):
        for qb in range(3):
            c0 = (db * 3 + qb) * 4
            for rr in range(4):
                o('    v_accvgpr_read_b32 v%d, a%d' % (V_T + 6 + (rr & 1), c0 + rr))
                o('    v_mul_f32 v%d, v%d, v%d' % (V_T + 6 + (rr & 1), V_T + 6 + (rr & 1), V_T + 3 + qb))
                o('    v_accvgpr_write_b32 a%d, v%d' % (c0 + rr, V_T + 6 + (rr & 1)))
    o('    s_nop 3')
    o('    s_setpc_b64 s[72:73]')
    return body + '\n'.join(r) + '\n'


K1_DESC = '''.amdhsa_kernel {name}
  .amdhsa_next_free_vgpr 512
  .amdhsa_next_free_sgpr 96
  .amdhsa_accum_offset 256
  .amdhsa_group_segment_fixed_size 0
  .amdhsa_kernarg_size 104
  .amdhsa_user_sgpr_count 2
  .amdhsa_user_sgpr_kernarg_segment_ptr 1
  .amdhsa_system_sgpr_workgroup_id_x 1
.end_amdhsa_kernel
'''

if __name__ == '__main__':
    print(gen_k1('k1_kernel'))
```

```python
import re

TRANS = ('v_exp_f32', 'v_log_f32', 'v_rcp_f32', 'v_rsq_f32', 'v_sqrt_f32', 'v_sin_f32', 'v_cos_f32')

_reg_re = re.compile(r'^(-|abs\(|-abs\()?([vas])(\d+)\)?$')
_rng_re = re.compile(r'^([vas])\[(\d+):(\d+)\]$')


def regs_of(tok):
    tok = tok.strip()
    m = _rng_re.match(tok)
    if m:
        return [(m.group(1), i) for i in range(int(m.group(2)), int(m.group(3)) + 1)]
    m = _reg_re.match(tok)
    if m:
        return [(m.group(2), int(m.group(3)))]
    if tok == 'vcc':
        return [('vcc', 0)]
    if tok == 'm0':
        return [('m0', 0)]
    if tok == 'exec':
        return [('exec', 0)]
    return []


class Inst:
    __slots__ = ('text', 'op', 'rd', 'wr', 'kind', 'tag', 'need', 'pre_nop', 'wait_vm', 'wait_lgkm', 'srcc', 'comment', 'wdep')

    def __init__(self, text, tag=None, need=None, comment=None):
        self.text = text
        self.tag = tag
        self.need = need
        self.pre_nop = 0
        self.wait_vm = None
        self.wait_lgkm = None
        self.srcc = []
        self.comment = comment
        self.wdep = []
        self.parse()

    def parse(self):
        t = self.text.strip()
        if t.endswith(':'):
            self.op = 'label'; self.kind = 'label'; self.rd = []; self.wr = []
            return
        parts = t.split(None, 1)
        op = parts[0]
        self.op = op
        rest = parts[1] if len(parts) > 1 else ''
        ops = [x.strip() for x in rest.split(',')] if rest else []
        mods = []
        if ops:
            last = ops[-1].split()
            if last:
                ops[-1] = last[0]
                mods = last[1:]
        rd, wr = [], []
        k = 'other'
        if op.startswith('v_mfma'):
            k = 'mfma'
            wr = regs_of(ops[0]); rd = regs_of(ops[1]) + regs_of(ops[2]) + regs_of(ops[3])
            self.srcc = regs_of(ops[3])
        elif op.startswith('v_permlane') and 'swap' in op:
            k = 'permlane'
            wr = regs_of(ops[0]) + regs_of(ops[1]); rd = list(wr)
        elif op.startswith('v_cmp'):
            k = 'valu'
            wr = regs_of(ops[0]); rd = sum((regs_of(x) for x in ops[1:]), [])
        elif op.startswith('v_readfirstlane') or op.startswith('v_readlane'):
            k = 'readlane'
            wr = regs_of(ops[0]); rd = sum((regs_of(x) for x in ops[1:]), [])
        elif op.startswith('v_'):
            k = 'trans' if op.split('_e')[0] in TRANS or op in TRANS else 'valu'
            wr = regs_of(ops[0]); rd = sum((regs_of(x) for x in ops[1:]), [])
            if op.startswith('v_fmac') or op.startswith('v_pk_fmac'):
                rd += wr
            if op.startswith('v_add_co') or op.startswith('v_addc_co'):
                wr += regs_of(ops[1])
        elif op.startswith('ds_bpermute'):
            k = 'ds_rd'
            wr = regs_of(ops[0]); rd = regs_of(ops[1]) + regs_of(ops[2])
        elif op.startswith('ds_read'):
            k = 'ds_rd'
            wr = regs_of(ops[0]); rd = regs_of(ops[1])
        elif op.startswith('ds_write'):
            k = 'ds_wr'
            rd = sum((regs_of(x) for x in ops), [])
        elif op.startswith('buffer_load'):
            if 'lds' in mods:
                k = 'vm_dma'
                rd = sum((regs_of(x) for x in ops), []) + [('m0', 0)]
            else:
                k = 'vm_ld'
                wr = regs_of(ops[0]); rd = sum((regs_of(x) for x in ops[1:]), [])
        elif op.startswith('buffer_store'):
            k = 'vm_st'
            rd = sum((regs_of(x) for x in ops), [])
            self.srcc = regs_of(ops[0])
        elif op.startswith('s_load'):
            k = 'smem'
            wr = regs_of(ops[0]); rd = regs_of(ops[1])
        elif op == 's_nop':
            k = 'nop'
        elif op == 's_waitcnt':
            k = 'wait'
        elif op == 's_barrier':
            k = 'barrier'
        elif op.startswith('s_cbranch') or op == 's_branch' or op == 's_endpgm':
            k = 'branch'
        elif op.startswith('s_cmp'):
            k = 'salu'
            rd = sum((regs_of(x) for x in ops), [])
        elif op in ('s_setprio', 's_sleep'):
            k = 'salu'
        elif op == 's_swappc_b64':
            k = 'salu'
            wr = regs_of(ops[0]); rd = regs_of(ops[1])
        elif op == 's_setpc_b64':
            k = 'branch'
            rd = regs_of(ops[0])
        elif op.startswith('s_'):
            k = 'salu'
            wr = regs_of(ops[0]); rd = sum((regs_of(x) for x in ops[1:]), [])
        else:
            raise ValueError('unknown instruction: ' + t)
        self.kind = k
        self.rd = rd
        self.wr = wr

    def nstates(self):
        if self.kind == 'label':
            return 0
        if self.kind == 'nop':
            return int(self.text.split()[1]) + 1
        return 1


class Prog:
    def __init__(self):
        self.ins = []
        self.segs = []
        self._loop_start = None
        self.custom = None

    def emit(self, text, tag=None, need=None, comment=None):
        i = Inst(text, tag, need, comment)
        self.ins.append(i)
        return i

    def __call__(self, text, **kw):
        return self.emit(text, **kw)

    def loop_begin(self):
        self._loop_start = len(self.ins)

    def loop_end(self, reps=2):
        self.segs.append((self._loop_start, len(self.ins), reps))
        self._loop_start = None

    def trace(self):
        if self.custom is not None:
            tr = []
            for (a, b) in self.custom:
                tr += list(range(a, b))
            return tr
        tr = []
        pos = 0
        for (a, b, r) in self.segs:
            tr += list(range(pos, a))
            for _ in range(r):
                tr += list(range(a, b))
            pos = b
        tr += list(range(pos, len(self.ins)))
        return tr

    def pass_waitcnt(self):
        tr = self.trace()
        vm = []
        lg = []
        smem_pending = False
        smem_dst = set()
        for idx in tr:
            I = self.ins[idx]
            if I.kind == 'label':
                continue
            touched = set(I.rd) | set(I.wr) | set(I.wdep)
            need_n = None
            for p, o in enumerate(vm):
                hit = bool(o['dst'] & touched) or (I.need and o['tag'] in I.need)
                if hit:
                    n = len(vm) - 1 - p
                    need_n = n if need_n is None else min(need_n, n)
            if I.kind == 'wait' and 'vmcnt(0)' in I.text:
                vm = []
            if I.kind in ('vm_ld', 'vm_st', 'vm_dma') and len(vm) >= 60:
                need_n = 56 if need_n is None else min(need_n, 56)
            if need_n is not None:
                need_n = min(need_n, 63)
                I.wait_vm = need_n if I.wait_vm is None else min(I.wait_vm, need_n)
                vm = vm[len(vm) - need_n:] if need_n > 0 else []
            need_l = None
            for p, o in enumerate(lg):
                if o['dst'] & touched:
                    n = len(lg) - 1 - p
                    need_l = n if need_l is None else min(need_l, n)
            if smem_pending and (smem_dst & touched):
                need_l = 0
            if I.kind == 'barrier':
                if any(o['wr'] for o in lg):
                    need_l = 0
            if I.kind == 'wait' and 'lgkmcnt(0)' in I.text:
                lg = []; smem_pending = False; smem_dst = set()
            if I.kind in ('ds_rd', 'ds_wr') and len(lg) >= 15:
                need_l = 12 if need_l is None else min(need_l, 12)
            if need_l is not None:
                if smem_pending:
                    need_l = 0
                need_l = min(need_l, 15)
                I.wait_lgkm = need_l if I.wait_lgkm is None else min(I.wait_lgkm, need_l)
                lg = lg[len(lg) - need_l:] if need_l > 0 else []
                if need_l == 0:
                    smem_pending = False; smem_dst = set()
            if I.kind in ('vm_ld', 'vm_st', 'vm_dma'):
                vm.append(dict(dst=set(I.wr), tag=I.tag))
            elif I.kind == 'ds_rd':
                lg.append(dict(dst=set(I.wr), wr=False))
            elif I.kind == 'ds_wr':
                lg.append(dict(dst=set(), wr=True))
            elif I.kind == 'smem':
                smem_pending = True; smem_dst |= set(I.wr)

    def materialize_waits(self):
        out = []
        idxmap = {}
        for i, I in enumerate(self.ins):
            idxmap[i] = len(out)
            if I.wait_vm is not None or I.wait_lgkm is not None:
                s = 's_waitcnt'
                if I.wait_vm is not None:
                    s += ' vmcnt(%d)' % I.wait_vm
                if I.wait_lgkm is not None:
                    s += ' lgkmcnt(%d)' % I.wait_lgkm
                out.append(Inst(s))
                I.wait_vm = I.wait_lgkm = None
            out.append(I)
        idxmap[len(self.ins)] = len(out)
        self.segs = [(idxmap[a], idxmap[b], r) for (a, b, r) in self.segs]
        if self.custom is not None:
            self.custom = [(idxmap[a], idxmap[b]) for (a, b) in self.custom]
        self.ins = out

    def verify_waits(self):
        tr = self.trace()
        vm = []; lg = []
        for idx in tr:
            I = self.ins[idx]
            if I.kind == 'label':
                continue
            if I.kind == 'wait':
                m = re.search(r'vmcnt\((\d+)\)', I.text)
                if m:
                    n = int(m.group(1)); vm = vm[len(vm) - n:] if n > 0 and n < len(vm) else (vm if n >= len(vm) else [])
                m = re.search(r'lgkmcnt\((\d+)\)', I.text)
                if m:
                    n = int(m.group(1)); lg = lg[len(lg) - n:] if n > 0 and n < len(lg) else (lg if n >= len(lg) else [])
                continue
            touched = set(I.rd) | set(I.wr) | set(I.wdep)
            for o in vm:
                if (o['dst'] & touched) or (I.need and o['tag'] in I.need):
                    raise RuntimeError('uncovered vmem dependency at: ' + I.text)
            for o in lg:
                if o['dst'] & touched:
                    raise RuntimeError('uncovered lds dependency at: ' + I.text)
            if I.kind == 'barrier' and any(o['wr'] for o in lg):
                raise RuntimeError('lds write outstanding at barrier')
            if I.kind in ('vm_ld', 'vm_st', 'vm_dma'):
                vm.append(dict(dst=set(I.wr), tag=I.tag))
            elif I.kind == 'ds_rd':
                lg.append(dict(dst=set(I.wr), wr=False))
            elif I.kind == 'ds_wr':
                lg.append(dict(dst=set(), wr=True))
            if len(vm) > 63:
                raise RuntimeError('too many outstanding vmem ops')
            if len(lg) > 15:
                raise RuntimeError('too many outstanding lds ops (%d) at %s' % (len(lg), I.text))

    def pass_hazards(self):
        for it in range(50):
            tr = self.trace()
            pos = 0
            lastw = {}
            lastsrcc = {}
            laststore = {}
            changed = False
            add = {}
            for idx in tr:
                I = self.ins[idx]
                if I.kind == 'label':
                    continue
                pos += I.pre_nop
                need = 0

                def req(p0, ws):
                    have = pos - p0 - 1
                    return max(0, ws - have)
                k = I.kind
                isvalu = k in ('valu', 'trans', 'permlane', 'readlane')
                for r in I.rd:
                    w = lastw.get(r)
                    if w is None:
                        continue
                    p0, wk, wi = w
                    wvalu = wk in ('valu', 'trans', 'permlane', 'readlane')
                    if r[0] in ('v', 'a'):
                        if wvalu and k == 'mfma':
                            need = max(need, req(p0, 2))
                        if wk == 'mfma':
                            if k == 'mfma':
                                if r in I.srcc and wi.wr == I.srcc:
                                    pass
                                elif r in I.srcc and not (r in (set(I.rd) - set(I.srcc))):
                                    need = max(need, req(p0, 6))
                                else:
                                    need = max(need, req(p0, 8))
                            else:
                                need = max(need, req(p0, 8))
                        if wk == 'trans' and isvalu and k != 'trans':
                            need = max(need, req(p0, 1))
                        if wk == 'trans' and k == 'trans':
                            need = max(need, req(p0, 1))
                        if wvalu and k == 'permlane':
                            need = max(need, req(p0, 2))
                        if wvalu and k == 'readlane':
                            need = max(need, req(p0, 1))
                    if r[0] in ('s', 'vcc'):
                        if wvalu:
                            if isvalu:
                                need = max(need, req(p0, 2))
                            elif k in ('vm_ld', 'vm_st', 'vm_dma'):
                                need = max(need, req(p0, 5))
                            else:
                                need = max(need, req(p0, 4))
                    if r[0] == 'm0' and wk == 'salu' and k == 'vm_dma':
                        need = max(need, req(p0, 1))
                for r in I.wr:
                    w = lastw.get(r)
                    if w is not None:
                        p0, wk, wi = w
                        if wk == 'mfma' and k != 'mfma':
                            need = max(need, req(p0, 8))
                        if wk == 'mfma' and k == 'mfma' and not (wi.wr == I.wr):
                            need = max(need, req(p0, 8))
                    if isvalu and r in lastsrcc:
                        need = max(need, req(lastsrcc[r], 3))
                    if r in laststore:
                        need = max(need, req(laststore[r], 2))
                if need > 0:
                    add[idx] = max(add.get(idx, 0), need)
                    pos += need
                for r in I.wr:
                    lastw[r] = (pos, k, I)
                if k == 'mfma':
                    for r in I.srcc:
                        lastsrcc[r] = pos
                if k == 'vm_st':
                    for r in I.srcc:
                        laststore[r] = pos
                pos += I.nstates()
            if not add:
                return
            for idx, n in add.items():
                self.ins[idx].pre_nop += n
        raise RuntimeError('hazard pass did not converge')

    def render(self):
        out = []
        for I in self.ins:
            n = I.pre_nop
            while n > 0:
                c = min(n, 16)
                out.append('    s_nop %d' % (c - 1))
                n -= c
            if I.kind == 'label':
                out.append(I.text)
            else:
                out.append('    ' + I.text + (('  ; ' + I.comment) if I.comment else ''))
        return '\n'.join(out) + '\n'

    def finalize(self):
        self.pass_waitcnt()
        self.materialize_waits()
        for _ in range(5):
            n0 = len(self.ins)
            self.pass_waitcnt_explicit()
            self.materialize_waits()
            if len(self.ins) == n0:
                break
        self.verify_waits()
        self.pass_hazards()
        return self.render()

    def pass_waitcnt_explicit(self):
        tr = self.trace()
        vm = []; lg = []
        for idx in tr:
            I = self.ins[idx]
            if I.kind == 'label':
                continue
            if I.kind == 'wait':
                m = re.search(r'vmcnt\((\d+)\)', I.text)
                if m:
                    n = int(m.group(1))
                    if n < len(vm):
                        vm = vm[len(vm) - n:] if n > 0 else []
                m = re.search(r'lgkmcnt\((\d+)\)', I.text)
                if m:
                    n = int(m.group(1))
                    if n < len(lg):
                        lg = lg[len(lg) - n:] if n > 0 else []
                continue
            touched = set(I.rd) | set(I.wr) | set(I.wdep)
            need_n = None
            for p, o in enumerate(vm):
                if (o['dst'] & touched) or (I.need and o['tag'] in I.need):
                    n = len(vm) - 1 - p
                    need_n = n if need_n is None else min(need_n, n)
            if I.kind in ('vm_ld', 'vm_st', 'vm_dma') and len(vm) >= 60:
                need_n = 56 if need_n is None else min(need_n, 56)
            if need_n is not None:
                need_n = min(need_n, 63)
                I.wait_vm = need_n if I.wait_vm is None else min(I.wait_vm, need_n)
                vm = vm[len(vm) - need_n:] if need_n > 0 else []
            need_l = None
            for p, o in enumerate(lg):
                if o['dst'] & touched:
                    n = len(lg) - 1 - p
                    need_l = n if need_l is None else min(need_l, n)
            if I.kind == 'barrier' and any(o['wr'] for o in lg):
                need_l = 0
            if I.kind in ('ds_rd', 'ds_wr') and len(lg) >= 15:
                need_l = 12 if need_l is None else min(need_l, 12)
            if need_l is not None:
                need_l = min(need_l, 15)
                I.wait_lgkm = need_l if I.wait_lgkm is None else min(I.wait_lgkm, need_l)
                lg = lg[len(lg) - need_l:] if need_l > 0 else []
            if I.kind in ('vm_ld', 'vm_st', 'vm_dma'):
                vm.append(dict(dst=set(I.wr), tag=I.tag))
            elif I.kind == 'ds_rd':
                lg.append(dict(dst=set(I.wr), wr=False))
            elif I.kind == 'ds_wr':
                lg.append(dict(dst=set(), wr=True))


def interleave(mf, fill, lead=0):
    out = []
    nm = len(mf)
    nf = len(fill)
    fi = 0
    for i, m in enumerate(mf):
        out.append(m)
        tgt = (nf * (i + 1) + nm - 1) // nm if nm else nf
        while fi < min(tgt, nf):
            out.append(fill[fi]); fi += 1
    while fi < nf:
        out.append(fill[fi]); fi += 1
    return out
```

```python
import math
from asmfw import Prog

X_BYTES = 8 * 192 * 640 * 2
KV_BYTES = 8 * 32 * 512 * 192 * 2
WQ_BYTES = 640 * 6144 * 2
WS_O_BYTES = 2 * 96 * 192 * 1024
TILE = 24576
RING = 6
LDS1 = TILE * RING
LOOKAHEAD = 6
SPREAD = 5
RS = 12

V_LANE = 1
V_GKV = 4
V_GW = 216
V_XOFF = 10
V_OOFF = 13
V_BP = 222
V_TOUCH = 223
V_DUMMY = 224
V_TOUCH2 = 240
V_ONES = 252
A_L = 216
MSUM = True
PAIRWAIT = True
TOUCH = False
PRETOUCH = True
ROT = False
PEEL = False
NT = True
V_KP = 14
V_VP = 16
V_WP = 20
V_KW = 24
V_VW = 26
V_MC = 30
V_L = 33
V_CM = 36
V_T = 39
V_S = [48, 96]
V_P = 144
V_A = 168
A_Q = 144

S_SLOT = 60
S_WOFF = 66
S_C = 70
S_THR = 71


def f32bits(x):
    import struct
    return struct.unpack('<I', struct.pack('<f', x))[0]


def gen_k1(name):
    p = Prog()
    e = p.emit
    e(name + ':')
    e('s_cmp_ge_u32 s2, 256')
    e('s_cbranch_scc1 L1_end')
    e('s_load_dwordx16 s[4:19], s[0:1], 0')
    e('s_load_dwordx4 s[20:23], s[0:1], 64')
    e('s_load_dwordx2 s[24:25], s[0:1], 96')
    e('s_and_b32 s67, s2, 7')
    e('s_lshr_b32 s68, s2, 3')
    e('s_lshr_b32 s52, s67, 2')
    e('s_and_b32 s67, s67, 3')
    e('s_lshl_b32 s67, s67, 2')
    e('s_lshr_b32 s69, s68, 3')
    e('s_add_u32 s67, s67, s69')
    e('s_lshl_b32 s54, s67, 1')
    e('s_and_b32 s53, s68, 7')
    e('v_lshrrev_b32 v2, 6, v0')
    e('v_and_b32 v%d, 63, v0' % V_LANE)
    e('v_readfirstlane_b32 s55, v2')
    e('s_mul_i32 s%d, s55, 6144' % S_WOFF)
    mk0 = len(p.ins)
    e('s_waitcnt lgkmcnt(0)')
    e('s_cmp_eq_u32 s52, 0')
    for (dst, a, b_, sz) in ((28, 4, 14, X_BYTES), (32, 10, 20, WQ_BYTES), (36, 10, 20, WQ_BYTES),
                             (40, 6, 16, KV_BYTES), (44, 8, 18, KV_BYTES)):
        e('s_cselect_b32 s%d, s%d, s%d' % (dst, a, b_))
        e('s_cselect_b32 s%d, s%d, s%d' % (dst + 1, a + 1, b_ + 1))
        e('s_mov_b32 s%d, %d' % (dst + 2, sz))
        e('s_mov_b32 s%d, 0x00020000' % (dst + 3))
    e('s_mov_b32 s48, s24')
    e('s_mov_b32 s49, s25')
    e('s_mov_b32 s50, %d' % WS_O_BYTES)
    e('s_mov_b32 s51, 0x00020000')
    e('s_cmp_eq_u32 s52, 0')
    e('s_cselect_b32 s24, s12, s22')
    e('s_cselect_b32 s25, s13, s23')
    e('s_mov_b32 s26, 0')
    e('s_mov_b32 s27, 0x00020000')
    e('s_and_b32 s77, s2, 3')
    e('s_mul_i32 s77, s77, 1966080')
    e('s_lshr_b32 s68, s2, 3')
    e('s_lshl_b32 s68, s68, 2')
    e('s_add_u32 s68, s68, s55')
    e('s_mul_i32 s68, s68, 15360')
    e('s_add_u32 s77, s77, s68')
    e('s_lshl_b32 s56, s53, 5')
    e('s_add_u32 s56, s56, s54')
    e('s_mul_i32 s56, s56, 196608')
    e('s_mul_i32 s57, s54, 384')
    e('s_mul_i32 s58, s53, 245760')
    e('s_mul_i32 s59, s52, 96')
    e('s_mul_i32 s67, s53, 12')
    e('s_add_u32 s59, s59, s67')
    e('s_mul_i32 s67, s55, 3')
    e('s_add_u32 s59, s59, s67')
    e('s_mul_i32 s59, s59, 192')
    e('s_mul_i32 s67, s54, 6')
    e('s_add_u32 s59, s59, s67')
    e('s_lshl_b32 s59, s59, 10')
    for k in range(RING):
        e('s_mov_b32 s%d, %d' % (S_SLOT + k, k * TILE))
    if ROT:
        e('s_lshr_b32 s67, s2, 3')
        e('s_add_u32 s67, s67, s2')
        for k in range(8):
            e('s_add_u32 s68, s67, %d' % k)
            e('s_and_b32 s68, s68, 7')
            e('s_mul_i32 s%d, s68, %d' % (86 + k, TILE))
    cs = (192.0 ** -0.5) * math.log2(math.e)
    e('s_mov_b32 s%d, 0x%08x' % (S_C, f32bits(cs)))
    e('s_mov_b32 s%d, 0x%08x' % (S_THR, f32bits(8.0)))
    e('s_getpc_b64 s[74:75]')
    e('L1_pc:')
    e('s_add_u32 s74, s74, L1_rescale-L1_pc')
    e('s_addc_u32 s75, s75, 0')
    L = V_LANE
    mk1 = len(p.ins)
    e('v_lshrrev_b32 v2, 4, v%d' % L)
    e('v_and_b32 v3, 15, v%d' % L)
    for j in range(3):
        e('v_add_u32 v40, %d, v%d' % (j * 64, L))
        e('v_mul_u32_u24 v41, 2731, v40')
        e('v_lshrrev_b32 v41, 16, v41')
        e('v_mul_u32_u24 v42, 24, v41')
        e('v_sub_u32 v42, v40, v42')
        e('v_xor_b32 v43, v42, v41')
        e('v_and_b32 v43, 7, v43')
        e('v_and_b32 v44, 24, v42')
        e('v_or_b32 v43, v43, v44')
        e('v_mul_u32_u24 v45, 384, v41')
        e('v_lshl_add_u32 v45, v43, 4, v45')
        e('v_add_u32 v45, s%d, v45' % S_WOFF)
        if j:
            e('v_subrev_u32 v45, %d, v45' % (j * 1024))
        e('v_mov_b32 v%d, v45' % (V_GKV + j))
        for half in range(2):
            e('v_and_b32 v43, 2, v41')
            if half:
                e('v_or_b32 v43, 4, v43')
            e('v_xor_b32 v43, v42, v43')
            e('v_and_b32 v43, 7, v43')
            e('v_or_b32 v43, v43, v44')
            e('s_lshl_b32 s67, s55, 4')
            e('v_add_u32 v45, %d, v41' % (half * 8))
            e('v_add_u32 v45, s67, v45')
            e('v_mul_u32_u24 v45, 12288, v45')
            e('v_lshl_add_u32 v45, v43, 4, v45')
            if j:
                e('v_subrev_u32 v45, %d, v45' % (j * 1024))
            e('v_mov_b32 v%d, v45' % (V_GW + half * 3 + j))
    e('s_mul_i32 s67, s55, 48')
    e('v_lshrrev_b32 v40, 2, v%d' % L)
    e('v_add_u32 v40, s67, v40')
    e('v_mul_u32_u24 v40, 1280, v40')
    e('v_and_b32 v41, 3, v%d' % L)
    e('v_lshl_add_u32 v%d, v41, 4, v40' % V_XOFF)
    e('v_lshl_add_u32 v40, v3, 2, v2')
    e('v_lshlrev_b32 v%d, 2, v40' % V_BP)
    e('v_add_u32 v%d, %d, v%d' % (V_XOFF + 1, 16 * 1280, V_XOFF))
    e('v_add_u32 v%d, %d, v%d' % (V_XOFF + 2, 32 * 1280, V_XOFF))
    e('v_lshlrev_b32 v%d, 4, v%d' % (V_OOFF, L))
    e('s_lshl_b32 s67, s55, 12')
    e('v_lshlrev_b32 v40, 6, v%d' % L)
    e('v_add_u32 v%d, s67, v40' % V_TOUCH)
    e('v_mov_b32 v%d, v40' % V_TOUCH2)
    mk2 = len(p.ins)
    for q in range(4):
        e('v_mov_b32 v%d, 0x3f803f80' % (V_ONES + q))
    e('v_and_b32 v40, 7, v%d' % L)
    e('v_xor_b32 v40, v40, v2')
    e('v_mul_u32_u24 v41, 384, v3')
    e('v_lshl_add_u32 v%d, v40, 4, v41' % V_KP)
    e('v_xor_b32 v%d, 64, v%d' % (V_KP + 1, V_KP))
    e('v_lshrrev_b32 v40, 2, v3')
    e('v_lshl_add_u32 v40, v2, 2, v40')
    e('v_and_b32 v41, 7, v40')
    e('v_bfe_u32 v42, v3, 1, 1')
    e('v_xor_b32 v41, v41, v42')
    e('v_mul_u32_u24 v40, 384, v40')
    e('v_and_b32 v43, 1, v3')
    e('v_lshl_add_u32 v40, v43, 3, v40')
    for j in range(4):
        e('v_xor_b32 v44, %d, v41' % (2 * j))
        e('v_lshl_add_u32 v%d, v44, 4, v40' % (V_VP + j))
    e('v_lshrrev_b32 v40, 2, v3')
    e('v_lshl_add_u32 v40, v2, 3, v40')
    e('v_bfe_u32 v41, v3, 3, 1')
    e('v_lshlrev_b32 v41, 1, v41')
    e('v_and_b32 v44, 1, v2')
    e('v_lshl_or_b32 v41, v44, 2, v41')
    e('v_xor_b32 v41, v41, v42')
    e('v_mul_u32_u24 v40, 384, v40')
    e('v_lshl_add_u32 v40, v43, 3, v40')
    for j in range(4):
        e('v_xor_b32 v44, %d, v41' % (2 * j))
        e('v_lshl_add_u32 v%d, v44, 4, v40' % (V_WP + j))

    mk3 = len(p.ins)
    blk_srd = p.ins[mk0:mk1]
    blk_pat = p.ins[mk1:mk2]
    blk_rest = p.ins[mk2:mk3]
    p.ins = p.ins[:mk0] + blk_pat + blk_srd
    tiles = [('W', t) for t in range(10)] + [('K', 0)]
    for c in range(7):
        tiles += [('K', c + 1), ('V', c)]
    tiles += [('V', 7)]
    NT = len(tiles)
    tindex = {t: i for i, t in enumerate(tiles)}

    def dma(ti):
        nxt = ti >= NT
        kind, idx = tiles[ti % NT]
        slot = S_SLOT + (ti % RING)
        tag = 'T%d' % (ti % NT)
        out = []
        o = lambda s, **kw: out.append((s, kw))
        o('s_add_u32 m0, s%d, s%d' % (slot, S_WOFF))
        if kind == 'W':
            srd = 36 if nxt else 32
            off = idx * 64 * 12288 + (384 if nxt else 0)
            o('s_add_u32 s67, s57, %d' % off)
            for j in range(3):
                o('buffer_load_dwordx4 v%d, s[%d:%d], s67 offen offset:%d lds' % (V_GW + j, srd, srd + 3, j * 1024), tag=tag)
            o('s_add_u32 m0, m0, 3072')
            for j in range(3):
                o('buffer_load_dwordx4 v%d, s[%d:%d], s67 offen offset:%d lds' % (V_GW + 3 + j, srd, srd + 3, j * 1024), tag=tag)
        else:
            assert not nxt
            srd = 40 if kind == 'K' else 44
            if ROT:
                o('s_add_u32 s67, s56, s%d' % (86 + idx))
            else:
                o('s_add_u32 s67, s56, %d' % (idx * TILE))
            for j in range(3):
                o('buffer_load_dwordx4 v%d, s[%d:%d], s67 offen offset:%d %slds' % (V_GKV + j, srd, srd + 3, j * 1024, 'nt ' if NT else ''), tag=tag)
            o('s_add_u32 m0, m0, 3072')
            o('s_add_u32 s67, s67, 3072')
            for j in range(3):
                o('buffer_load_dwordx4 v%d, s[%d:%d], s67 offen offset:%d %slds' % (V_GKV + j, srd, srd + 3, j * 1024, 'nt ' if NT else ''), tag=tag)
        return out

    def xloads(t):
        out = []
        for ks in range(2):
            for qb in range(3):
                r = V_S[0] + (t % 4) * 24 + (ks * 3 + qb) * 4
                out.append(('buffer_load_dwordx4 v[%d:%d], v%d, s[28:31], s58 offen offset:%d' %
                            (r, r + 3, V_XOFF + qb, (t * 2 + ks) * 64), {}))
        return out

    def xperm(t):
        out = []
        for f in range(6):
            r = V_S[0] + (t % 4) * 24 + f * 4
            for q in range(4):
                out.append(('ds_bpermute_b32 v%d, v%d, v%d' % (r + q, V_BP, r + q), {}))
        return out

    pend = []
    spread = [False]

    def enter_tile(ti):
        kind, idx = tiles[ti % NT]
        slot = S_SLOT + (ti % RING)
        out = [('s_barrier', dict(need=['T%d' % (ti % NT)]))]
        if kind == 'K':
            for j in range(2):
                out.append(('v_add_u32 v%d, s%d, v%d' % (V_KW + j, slot, V_KP + j), {}))
        else:
            src = V_VP if kind == 'V' else V_WP
            for j in range(4):
                out.append(('v_add_u32 v%d, s%d, v%d' % (V_VW + j, slot, src + j), {}))
        if spread[0]:
            grp = []
            for it in dma(ti + 4):
                grp.append(it)
                if it[0].startswith('buffer_load'):
                    pend.append(grp); grp = []
        else:
            out += dma(ti + 4)
        return out

    frags = []

    def add_frag(ti, reads, mf):
        frags.append(dict(tile=ti, reads=reads, mf=mf, fill=[], hard_before=[]))

    phase_start = {}

    def acc(db, qb):
        c = (db * 3 + qb) * 4
        return 'a[%d:%d]' % (c, c + 3)

    for t in range(10):
        ti = tindex[('W', t)]
        phase_start[('QP', t)] = len(frags)
        for ks in range(2):
            for dqb in range(12):
                off = (dqb >> 2) * 128 + ks * 12288
                b = V_VW + (dqb & 3)
                reads = [('ds_read_b64_tr_b16', 0, b, off), ('ds_read_b64_tr_b16', 2, b, off + 1536)]
                mf = []
                for qb in range(3):
                    xr = V_S[0] + (t % 4) * 24 + (ks * 3 + qb) * 4
                    src = '0' if (t == 0 and ks == 0) else acc(dqb, qb)
                    mf.append((acc(dqb, qb), 'v[%d:%d]' % (xr, xr + 3), src))
                add_frag(ti, reads, mf)

    def add_qk(c):
        ti = tindex[('K', c)]
        sb = V_S[c % 2]
        for kb in range(4):
            for ds in range(6):
                off = kb * 6144 + (ds >> 1) * 128
                reads = [('ds_read_b128', 0, V_KW + (ds & 1), off)]
                mf = []
                for qb in range(3):
                    d = sb + (kb * 3 + qb) * 4
                    q = A_Q + (ds * 3 + qb) * 4
                    dst = 'v[%d:%d]' % (d, d + 3)
                    mf.append((dst, 'a[%d:%d]' % (q, q + 3), '0' if ds == 0 else dst))
                add_frag(ti, reads, mf)

    def add_pv(c):
        ti = tindex[('V', c)]
        for ks in range(2):
            for db in range(12):
                off = (db >> 2) * 128 + ks * 12288
                b = V_VW + (db & 3)
                reads = [('ds_read_b64_tr_b16', 0, b, off), ('ds_read_b64_tr_b16', 2, b, off + 6144)]
                mf = []
                for qb in range(3):
                    pr = V_P + (ks * 3 + qb) * 4
                    src = '0' if (c == 0 and ks == 0) else acc(db, qb)
                    mf.append((acc(db, qb), 'v[%d:%d]' % (pr, pr + 3), src))
                add_frag(ti, reads, mf)
                if MSUM and db == 0:
                    ex = []
                    for qb in range(3):
                        pr = V_P + (ks * 3 + qb) * 4
                        la = 'a[%d:%d]' % (A_L + qb * 4, A_L + qb * 4 + 3)
                        src = '0' if (c == 0 and ks == 0) else la
                        ex.append('v_mfma_f32_16x16x32_bf16 %s, v[%d:%d], v[%d:%d], %s' % (la, V_ONES, V_ONES + 3, pr, pr + 3, src))
                    frags[-1]['extra'] = ex

    phase_start[('A', -1)] = len(frags)
    add_qk(0)
    for c in range(8):
        phase_start[('A', c)] = len(frags)
        if c < 7:
            add_qk(c + 1)
        phase_start[('B', c)] = len(frags)
        add_pv(c)
    NF = len(frags)
    assert NF % RS == 0, NF
    phase_start['END'] = NF

    def maxtree(c, dst):
        sb = V_S[c % 2]
        out = []
        for step in range(8):
            for qb in range(3):
                regs = [sb + (kb * 3 + qb) * 4 + r for kb in range(4) for r in range(4)]
                if step == 0:
                    out.append(('v_max3_f32 v%d, v%d, v%d, v%d' % (dst + qb, regs[0], regs[1], regs[2]), {}))
                elif step < 7:
                    out.append(('v_max3_f32 v%d, v%d, v%d, v%d' % (dst + qb, dst + qb, regs[2 * step + 1], regs[2 * step + 2]), {}))
                else:
                    out.append(('v_max_f32 v%d, v%d, v%d' % (dst + qb, dst + qb, regs[15]), {}))
        return out

    def xlane(op, src, tmp):
        out = []
        for sw in ('v_permlane16_swap_b32', 'v_permlane32_swap_b32'):
            for qb in range(3):
                out.append(('v_mov_b32 v%d, v%d' % (tmp + qb, src + qb), {}))
            for qb in range(3):
                out.append(('%s v%d, v%d' % (sw, src + qb, tmp + qb), {}))
            for qb in range(3):
                out.append(('%s v%d, v%d, v%d' % (op, src + qb, src + qb, tmp + qb), {}))
        return out

    def exps(c, kbs=(0, 1, 2, 3)):
        sb = V_S[c % 2]
        out = []
        for kb in kbs:
            for qb in range(3):
                base = sb + (kb * 3 + qb) * 4
                for r in range(4):
                    out.append(('v_fma_f32 v%d, v%d, s%d, -v%d' % (base + r, base + r, S_C, V_MC + qb), {}))
                for r in range(4):
                    out.append(('v_exp_f32 v%d, v%d' % (base + r, base + r), {}))
            if kb >= 1:
                out += cvts(c, kb - 1)
        if 3 in kbs:
            out += cvts(c, 3)
        return out

    def cvts(c, kb):
        sb = V_S[c % 2]
        out = []
        for qb in range(3):
            base = sb + (kb * 3 + qb) * 4
            pr = V_P + ((kb >> 1) * 3 + qb) * 4 + (kb & 1) * 2
            out.append(('v_cvt_pk_bf16_f32 v%d, v%d, v%d' % (pr, base, base + 1), {}))
            out.append(('v_cvt_pk_bf16_f32 v%d, v%d, v%d' % (pr + 1, base + 2, base + 3), {}))
        return out

    def sums(c):
        sb = V_S[c % 2]
        out = []
        for kb in range(4):
            for r in range(4):
                for qb in range(3):
                    reg = sb + (kb * 3 + qb) * 4 + r
                    if c == 0 and kb == 0 and r == 0:
                        out.append(('v_mov_b32 v%d, v%d' % (V_L + qb, reg), {}))
                    else:
                        out.append(('v_add_f32 v%d, v%d, v%d' % (V_L + qb, V_L + qb, reg), {}))
        return out

    def check():
        out = []
        for qb in range(3):
            out.append(('v_fma_f32 v%d, v%d, s%d, -v%d' % (V_T + qb, V_CM + qb, S_C, V_MC + qb), {}))
        out.append(('v_max3_f32 v%d, v%d, v%d, v%d' % (V_T, V_T, V_T + 1, V_T + 2), {}))
        out.append(('v_cmp_lt_f32 s[78:79], s%d, v%d' % (S_THR, V_T), {}))
        return out

    phase_fill = {}
    phase_fill1 = {}
    hard = {}

    qconv = []
    for j in range(6):
        for qb in range(3):
            t0 = V_S[1] + ((j * 3 + qb) % 4) * 12
            for h2 in range(2):
                c0 = ((2 * j + h2) * 3 + qb) * 4
                for r in range(4):
                    qconv.append(('v_accvgpr_read_b32 v%d, a%d' % (t0 + h2 * 4 + r, c0 + r), {}))
            X = t0 + 8
            qconv.append(('v_cvt_pk_bf16_f32 v%d, v%d, v%d' % (X, t0, t0 + 1), {}))
            qconv.append(('v_cvt_pk_bf16_f32 v%d, v%d, v%d' % (X + 1, t0 + 2, t0 + 3), {}))
            qconv.append(('v_cvt_pk_bf16_f32 v%d, v%d, v%d' % (X + 2, t0 + 4, t0 + 5), {}))
            qconv.append(('v_cvt_pk_bf16_f32 v%d, v%d, v%d' % (X + 3, t0 + 6, t0 + 7), {}))
            qconv.append(('v_permlane32_swap_b32 v%d, v%d' % (X, X + 2), {}))
            qconv.append(('v_permlane32_swap_b32 v%d, v%d' % (X + 1, X + 3), {}))
            qconv.append(('v_permlane16_swap_b32 v%d, v%d' % (X, X + 2), {}))
            qconv.append(('v_permlane16_swap_b32 v%d, v%d' % (X + 1, X + 3), {}))
            q = A_Q + (j * 3 + qb) * 4
            for r in range(4):
                qconv.append(('v_accvgpr_write_b32 a%d, v%d' % (q + r, X + r), {}))
    hard[phase_start[('A', -1)]] = qconv

    for t in range(9):
        phase_fill[('QP', t)] = xperm(t + 1)
    hard[phase_start[('QP', 0)]] = xperm(0)
    for c in range(8):
        fa = []
        if c == 0:
            fa += maxtree(0, V_CM) + xlane('v_max_f32', V_CM, V_T)
            for qb in range(3):
                fa.append(('v_mul_f32 v%d, s%d, v%d' % (V_MC + qb, S_C, V_CM + qb), {}))
        fa += exps(c)
        phase_fill[('A', c)] = fa
        fb = [] if MSUM else sums(c)
        if c < 7:
            fb = fb[:24] + maxtree(c + 1, V_CM) + fb[24:] + check()
        phase_fill[('B', c)] = fb
        phase_fill1[('B', c)] = []

    def emit_list(lst):
        for (s, kw) in lst:
            e(s, **kw)

    def frag_reads(fi, nxt_iter=False):
        f = frags[fi % NF]
        out = []
        ti = f['tile'] + (NT if fi >= NF else 0)
        if fi % NF == 0 or frags[(fi % NF) - 1]['tile'] != f['tile']:
            out += enter_tile(ti)
        r = V_A + (fi % RS) * 4
        for (op, ro, base, off) in f['reads']:
            if op == 'ds_read_b128':
                out.append(('ds_read_b128 v[%d:%d], v%d offset:%d' % (r, r + 3, base, off), {}))
            else:
                out.append(('%s v[%d:%d], v%d offset:%d' % (op, r + ro, r + ro + 1, base, off), {}))
        return out

    emit_list(dma(0))
    emit_list(xloads(0))
    touch_groups = []
    if PRETOUCH:
        e('s_lshl_b32 s82, s53, 2')
        e('s_add_u32 s82, s82, s55')
        e('s_mul_i32 s82, s82, %d' % (20 * 12288))
        e('s_add_u32 s82, s82, s57')
        e('s_lshr_b32 s83, s2, 6')
        e('s_lshl_b32 s83, s83, 2')
        e('s_add_u32 s83, s83, s55')
        e('s_mul_i32 s83, s83, %d' % (12 * 1280))
        e('s_add_u32 s83, s83, s58')
        for n in range(4):
            e('v_add_u32 v40, %d, v%d' % (n * 64, V_LANE))
            e('v_min_u32 v40, 239, v40')
            e('v_mul_u32_u24 v41, 5462, v40')
            e('v_lshrrev_b32 v41, 16, v41')
            e('v_mul_u32_u24 v42, 12, v41')
            e('v_sub_u32 v42, v40, v42')
            e('v_mul_u32_u24 v41, 12288, v41')
            e('v_lshl_add_u32 v%d, v42, 6, v41' % (241 + n))
            touch_groups.append([('buffer_load_dword v%d, v%d, s[32:35], s82 offen' % (V_DUMMY + n, 241 + n), {})])
            e('v_mul_u32_u24 v41, 3277, v40')
            e('v_lshrrev_b32 v41, 16, v41')
            e('v_mul_u32_u24 v42, 20, v41')
            e('v_sub_u32 v42, v40, v42')
            e('v_mul_u32_u24 v41, 1280, v41')
            e('v_lshl_add_u32 v%d, v42, 6, v41' % (245 + n))
            touch_groups.append([('buffer_load_dword v%d, v%d, s[28:31], s83 offen' % (V_DUMMY + 4 + n, 245 + n), {})])
    p.ins += blk_rest
    spread[0] = True

    def groups_of(lst):
        gs, grp = [], []
        for it in lst:
            grp.append(it)
            if it[0].startswith('buffer_load'):
                gs.append(grp); grp = []
        return gs
    if PEEL:
        for ti in range(1, 4):
            pend.extend(groups_of(dma(ti)))
            pend.extend([[it] for it in xloads(ti)])
        pend.extend(touch_groups)
    else:
        for ti in range(1, 4):
            emit_list(dma(ti))
        for ti in range(1, 4):
            emit_list(xloads(ti))
        for g in touch_groups:
            emit_list(g)
        spread[0] = False
    for fi in range(LOOKAHEAD):
        emit_list(frag_reads(fi))
    spread[0] = True
    e('s_mov_b32 s76, 0')
    e('s_mov_b32 s38, %d' % WQ_BYTES)

    order = [('QP', t) for t in range(10)] + [('A', -1)]
    for c in range(8):
        order += [('A', c), ('B', c)]
    gcount = [0]

    def emit_phase(pi, peeled=False):
        ph = order[pi]
        a = phase_start[ph]
        b_ = phase_start[order[pi + 1]] if pi + 1 < len(order) else NF
        fill = phase_fill.get(ph, [])
        if a in hard:
            emit_list(hard[a])
        if ph[0] == 'QP' and 1 <= ph[1] and ph[1] + 3 < 10:
            for it in xloads(ph[1] + 3):
                pend.append([it])
        if ph == ('A', 6):
            for n in range(4):
                pend.append([('buffer_load_dword v%d, v%d, s[24:27], s77 offen offset:%d' % (V_DUMMY + n, V_TOUCH2, 0), {}),
                             ('s_add_u32 s77, s77, 4096', {})])
        nm = (b_ - a) * 3
        fi_done = 0
        mcount = 0
        fill1 = list(phase_fill1.get(ph, []))
        n1 = len(fill1)
        for fi in range(a, b_):
            emit_list(frag_reads(fi + LOOKAHEAD))
            if fill1 and fi - a >= 11:
                emit_list(fill1); fill1 = []
            r = V_A + (fi % RS) * 4
            for ex in frags[fi].get('extra', []):
                e(ex)
            first = True
            for (dst, bsrc, csrc) in frags[fi]['mf']:
                I_ = e('v_mfma_f32_16x16x32_bf16 %s, v[%d:%d], %s, %s' % (dst, r, r + 3, bsrc, csrc))
                if PAIRWAIT and first and fi % 2 == 0 and fi + 1 < b_:
                    r2 = V_A + ((fi + 1) % RS) * 4
                    I_.wdep = [('v', r2 + q) for q in range(4)]
                first = False
                mcount += 1
                gcount[0] += 1
                if pend and (peeled or gcount[0] % SPREAD == 0):
                    emit_list(pend.pop(0))
                if fill1:
                    while fill1 and (n1 - len(fill1)) < (n1 * mcount + 29) // 30:
                        s_, kw = fill1.pop(0)
                        e(s_, **kw)
                    tgt = 0
                elif n1:
                    tgt = (len(fill) * max(0, mcount - 30) + (nm - 30) - 1) // (nm - 30)
                    tgt = min(tgt, len(fill))
                elif peeled:
                    tgt = 0 if mcount < 48 else (len(fill) * (mcount - 47) + 24) // 25
                    tgt = min(tgt, len(fill))
                else:
                    tgt = (len(fill) * mcount + nm - 1) // nm
                while fi_done < tgt:
                    s_, kw = fill[fi_done]
                    e(s_, **kw)
                    fi_done += 1
        while fi_done < len(fill):
            s_, kw = fill[fi_done]
            e(s_, **kw)
            fi_done += 1
        if pi == 0:
            while pend:
                emit_list(pend.pop(0))
        if ph[0] == 'B' and ph[1] < 7:
            e('s_cmp_lg_u64 s[78:79], 0')
            e('s_cbranch_scc0 L1_skip%d' % ph[1])
            e('s_swappc_b64 s[72:73], s[74:75]')
            e('L1_skip%d:' % ph[1])

    if PEEL:
        emit_phase(0, peeled=True)
        e('s_branch L1_qp1')
    i_head = len(p.ins)
    e('L1_head:')
    e('s_cmp_eq_u32 s76, 1')
    e('s_cselect_b32 s38, 0, %d' % WQ_BYTES)
    e('s_cselect_b32 s26, %d, 0' % WQ_BYTES)
    emit_phase(0)
    i_qp1 = len(p.ins)
    e('L1_qp1:')
    for pi in range(1, len(order)):
        emit_phase(pi)
    while pend:
        emit_list(pend.pop(0))
    for t in range(4):
        emit_list(xloads(t))
    if MSUM:
        for qb in range(3):
            e('v_accvgpr_read_b32 v%d, a%d' % (V_L + qb, A_L + qb * 4))
    else:
        emit_list(xlane('v_add_f32', V_L, V_T))
    for qb in range(3):
        e('v_rcp_f32 v%d, v%d' % (V_T + 3 + qb, V_L + qb))
    TMP = 144
    n = 0
    for j in range(6):
        for qb in range(3):
            t0 = TMP + (n % 2) * 12
            n += 1
            for h2 in range(2):
                c0 = ((2 * j + h2) * 3 + qb) * 4
                for r in range(4):
                    e('v_accvgpr_read_b32 v%d, a%d' % (t0 + h2 * 4 + r, c0 + r))
            for r in range(8):
                e('v_mul_f32 v%d, v%d, v%d' % (t0 + r, t0 + r, V_T + 3 + qb))
            X = t0 + 8
            e('v_cvt_pk_bf16_f32 v%d, v%d, v%d' % (X, t0, t0 + 1))
            e('v_cvt_pk_bf16_f32 v%d, v%d, v%d' % (X + 1, t0 + 2, t0 + 3))
            e('v_cvt_pk_bf16_f32 v%d, v%d, v%d' % (X + 2, t0 + 4, t0 + 5))
            e('v_cvt_pk_bf16_f32 v%d, v%d, v%d' % (X + 3, t0 + 6, t0 + 7))
            e('v_permlane32_swap_b32 v%d, v%d' % (X, X + 2))
            e('v_permlane32_swap_b32 v%d, v%d' % (X + 1, X + 3))
            e('v_permlane16_swap_b32 v%d, v%d' % (X, X + 2))
            e('v_permlane16_swap_b32 v%d, v%d' % (X + 1, X + 3))
            e('s_add_u32 s67, s59, %d' % (qb * 196608 + j * 1024))
            e('buffer_store_dwordx4 v[%d:%d], v%d, s[48:51], s67 offen' % (X, X + 3, V_OOFF))
    e('s_sub_u32 s77, s77, 16384')
    e('s_add_u32 s56, s56, 196608')
    e('s_add_u32 s57, s57, 384')
    e('s_add_u32 s59, s59, 6144')
    rot = NT % RING
    tmp = [80 + k for k in range(RING)]
    for k in range(RING):
        e('s_mov_b32 s%d, s%d' % (tmp[k], S_SLOT + (k + rot) % RING))
    for k in range(RING):
        e('s_mov_b32 s%d, s%d' % (S_SLOT + k, tmp[k]))
    e('s_add_u32 s76, s76, 1')
    e('s_cmp_lt_u32 s76, 2')
    e('s_cbranch_scc1 L1_head')
    i_end = len(p.ins)
    e('L1_end:')
    e('s_endpgm')
    if PEEL:
        p.custom = [(0, i_head), (i_qp1, i_end), (i_head, i_end), (i_end, len(p.ins))]
    else:
        p.custom = [(0, i_end), (i_head, i_end), (i_end, len(p.ins))]
    body = p.finalize()

    r = []
    o = r.append
    o('L1_rescale:')
    o('    s_nop 15')
    for sw in ('v_permlane16_swap_b32', 'v_permlane32_swap_b32'):
        for qb in range(3):
            o('    v_mov_b32 v%d, v%d' % (V_T + qb, V_CM + qb))
        o('    s_nop 1')
        for qb in range(3):
            o('    %s v%d, v%d' % (sw, V_CM + qb, V_T + qb))
        o('    s_nop 1')
        for qb in range(3):
            o('    v_max_f32 v%d, v%d, v%d' % (V_CM + qb, V_CM + qb, V_T + qb))
        o('    s_nop 1')
    for qb in range(3):
        o('    v_mul_f32 v%d, s%d, v%d' % (V_T + qb, S_C, V_CM + qb))
    for qb in range(3):
        o('    v_max_f32 v%d, v%d, v%d' % (V_T + qb, V_T + qb, V_MC + qb))
    for qb in range(3):
        o('    v_sub_f32 v%d, v%d, v%d' % (V_T + 3 + qb, V_MC + qb, V_T + qb))
    for qb in range(3):
        o('    v_exp_f32 v%d, v%d' % (V_T + 3 + qb, V_T + 3 + qb))
    for qb in range(3):
        o('    v_mov_b32 v%d, v%d' % (V_MC + qb, V_T + qb))
    o('    s_nop 1')
    if MSUM:
        for qb in range(3):
            for rr in range(4):
                o('    v_accvgpr_read_b32 v%d, a%d' % (V_T + 6 + (rr & 1), A_L + qb * 4 + rr))
                o('    v_mul_f32 v%d, v%d, v%d' % (V_T + 6 + (rr & 1), V_T + 6 + (rr & 1), V_T + 3 + qb))
                o('    v_accvgpr_write_b32 a%d, v%d' % (A_L + qb * 4 + rr, V_T + 6 + (rr & 1)))
    else:
        for qb in range(3):
            o('    v_mul_f32 v%d, v%d, v%d' % (V_L + qb, V_L + qb, V_T + 3 + qb))
    for db in range(12):
        for qb in range(3):
            c0 = (db * 3 + qb) * 4
            for rr in range(4):
                o('    v_accvgpr_read_b32 v%d, a%d' % (V_T + 6 + (rr & 1), c0 + rr))
                o('    v_mul_f32 v%d, v%d, v%d' % (V_T + 6 + (rr & 1), V_T + 6 + (rr & 1), V_T + 3 + qb))
                o('    v_accvgpr_write_b32 a%d, v%d' % (c0 + rr, V_T + 6 + (rr & 1)))
    o('    s_nop 3')
    o('    s_setpc_b64 s[72:73]')
    return body + '\n'.join(r) + '\n'


K1_DESC = '''.amdhsa_kernel {name}
  .amdhsa_next_free_vgpr 512
  .amdhsa_next_free_sgpr 96
  .amdhsa_accum_offset 256
  .amdhsa_group_segment_fixed_size 0
  .amdhsa_kernarg_size 104
  .amdhsa_user_sgpr_count 2
  .amdhsa_user_sgpr_kernarg_segment_ptr 1
  .amdhsa_system_sgpr_workgroup_id_x 1
.end_amdhsa_kernel
'''

if __name__ == '__main__':
    print(gen_k1('k1_kernel'))
```
